```python
import torch

def _softmax(x, axis=-1):
    return torch.softmax(x, dim=axis)
def _gelu(x):
    return torch.nn.functional.gelu(x, approximate="tanh")
def _silu(x):
    return torch.nn.functional.silu(x)
def _sigmoid(x):
    return torch.sigmoid(x)
def _layernorm(x, axis=-1, eps=1e-5):
    m = x.mean(dim=axis, keepdim=True)
    v = x.var(dim=axis, keepdim=True, unbiased=False)
    return (x - m) / torch.sqrt(v + eps)
def _scatter_add(tgt, idx, src, axis=0):
    return tgt.clone().index_add_(axis, idx, src)
def _segment_sum(src, seg, n):
    out = torch.zeros((n,) + src.shape[1:], dtype=src.dtype)
    return out.index_add_(0, seg, src)
def _pad(x, pw):
    flat = tuple(v for pair in reversed(pw) for v in pair)
    return torch.nn.functional.pad(x, flat)

kernel_name = 'gated_mix__ssm_conv_h3__glu_gated_glu__prompt'

def setup_inputs():

    _w = (lambda a: (lambda t: t.to(torch.bfloat16) if t.is_floating_point() else t)(torch.as_tensor(a)))
    def _A_setup():
        B, S, D = 1, 2048, 640
        ks = 4
        return {
            "q": _w((lambda *s: torch.randn(*s, dtype=torch.bfloat16) * 0.05)(B, S, D)),
            "k": _w((lambda *s: torch.randn(*s, dtype=torch.bfloat16) * 0.4)(B, S, D)),
            "v": _w((lambda *s: torch.randn(*s, dtype=torch.bfloat16) * 0.4)(B, S, D)),
            "shift_k": _w((lambda *s: torch.randn(*s, dtype=torch.bfloat16) * 0.4)(D, ks) * 0.5),
            "ssm_k": _w((lambda *s: torch.randn(*s, dtype=torch.bfloat16) * 1.6)(D, S) * (1.0 / S ** 0.5)),
            "ssm_D": _w((lambda *s: torch.randn(*s, dtype=torch.bfloat16) * 0.4)(D)),
        }
    _A_in = _A_setup()

    def _B_setup():
        B, S, D, F = 1, 2048, 640, 1536
        return {
            "x": _w((lambda *s: torch.randn(*s, dtype=torch.bfloat16) * 0.05)(B, S, D)),
            "w_gate": _w((lambda *s: torch.randn(*s, dtype=torch.bfloat16) * 0.4)(D, F)),
            "w_up": _w((lambda *s: torch.randn(*s, dtype=torch.bfloat16) * 0.05)(D, F)),
            "w_down": _w((lambda *s: torch.randn(*s, dtype=torch.bfloat16) * 0.05)(F, D)),
        }
    _B_in = _B_setup()

    return {
        "A_q": _A_in["q"],
        "A_k": _A_in["k"],
        "A_v": _A_in["v"],
        "A_shift_k": _A_in["shift_k"],
        "A_ssm_k": _A_in["ssm_k"],
        "A_ssm_D": _A_in["ssm_D"],
        "B_x": _B_in["x"],
        "B_w_gate": _B_in["w_gate"],
        "B_w_up": _B_in["w_up"],
        "B_w_down": _B_in["w_down"],
        "gate_w": _w((lambda *s: torch.randn(*s, dtype=torch.bfloat16) * 0.05)(640) * 16.0),
    }

def reference(A_q, A_k, A_v, A_shift_k, A_ssm_k, A_ssm_D, B_x, B_w_gate, B_w_up, B_w_down, gate_w):
    def _A_ref(q, k, v, shift_k, ssm_k, ssm_D):
        B, S, D = q.shape
        ks = shift_k.shape[-1]
        k_pad = _pad(k, ((0, 0), (ks - 1, 0), (0, 0)))
        k_shift = torch.zeros_like(k)
        for t in range(ks):
            k_shift = k_shift + k_pad[:, t:t + S, :] * shift_k[:, ks - 1 - t][None, None, :]
        kv = k_shift * v
        L = 2 * S
        kv_pad = _pad(kv, ((0, 0), (0, S), (0, 0)))
        kf_pad = _pad(ssm_k, ((0, 0), (0, S)))
        kv_f = (lambda x, axes=(-2,-1): torch.fft.rfft2(x.float(), dim=axes))(kv_pad[:, None, :, :], axes=(1, 2))
        kf_f = (lambda x, axes=(-2,-1): torch.fft.rfft2(x.float(), dim=axes))(kf_pad[:, None, :], axes=(1, 2))
        kf_f = (lambda x, *d: x.permute(*d))(kf_f, 1, 2, 0)
        y_f = kv_f * kf_f[None, :, :, :]
        y = (lambda x, s, axes=(-2,-1): torch.fft.irfft2(x, s=s, dim=axes).to(torch.bfloat16))(y_f, (1, L), axes=(1, 2))[:, 0, :S, :]
        y = y + kv * ssm_D[None, None, :]
        return q * y

    def _B_ref(x, w_gate, w_up, w_down):
        g = torch.einsum("bsd,df->bsf", x, w_gate)
        u = torch.einsum("bsd,df->bsf", x, w_up)
        h = _sigmoid(g) * u
        return torch.einsum("bsf,fd->bsd", h, w_down)

    x = A_q
    g = _sigmoid((x * gate_w).sum(-1, keepdims=True))
    a = _A_ref(x, A_k, A_v, A_shift_k, A_ssm_k, A_ssm_D)
    b = _B_ref(x, B_w_gate, B_w_up, B_w_down)
    return g * a + (1 - g) * b
```

```python
import re
class Asm:
    def __init__(self):
        self.lines = []
        self.vm = []
    def __call__(self, s):
        for l in s.strip("\n").split("\n"):
            l = l.strip()
            if l: self.lines.append("    " + l)
    def label(self, l): self.lines.append(l + ":")
    def comment(self, c): self.lines.append("    ; " + c)
    def vm_reset(self): self.vm = []
    def vmem(self, s, tag=None):
        self(s); self.vm.append(tag)
    def vm_wait(self, tag):
        idx = max(i for i, t in enumerate(self.vm) if t == tag)
        n = len(self.vm) - 1 - idx
        self(f"s_waitcnt vmcnt({min(n,63)})")
    def text(self): return "\n".join(self.lines) + "\n"

def vr(a, n=1): return f"v{a}" if n == 1 else f"v[{a}:{a+n-1}]"
def sr(a, n=1): return f"s{a}" if n == 1 else f"s[{a}:{a+n-1}]"

_reg = re.compile(r"\b([vsa])(\d+)\b|\b([vsa])\[(\d+):(\d+)\]|\b(vcc|exec|m0)\b")
def regs_of(op):
    out = set()
    for m in _reg.finditer(op):
        if m.group(1): out.add((m.group(1), int(m.group(2))))
        elif m.group(3):
            for i in range(int(m.group(4)), int(m.group(5)) + 1): out.add((m.group(3), i))
        else: out.add((m.group(6), 0))
    return out
TRANS = ("v_exp_f32","v_log_f32","v_rcp_f32","v_rsq_f32","v_sqrt_f32","v_sin_f32","v_cos_f32")
def parse(line):
    l = line.split(";")[0].strip()
    if not l or l.endswith(":") or l.startswith("."): return None
    p = l.split(None, 1)
    mn = p[0]; ops = [o.strip() for o in (p[1].split(",") if len(p) > 1 else [])]
    return mn, ops
def classify(mn, ops):
    wr, rd = set(), set()
    kind = "other"
    if mn.startswith("v_mfma"):
        kind = "mfma"; wr = regs_of(ops[0]); rd = regs_of(ops[1]) | regs_of(ops[2]) | regs_of(ops[3])
    elif mn.startswith("v_cmp"):
        kind = "valu"; wr = regs_of(ops[0]);
        for o in ops[1:]: rd |= regs_of(o)
    elif mn.startswith("v_"):
        kind = "valu"; wr = regs_of(ops[0])
        for o in ops[1:]: rd |= regs_of(o)
        if mn.startswith(("v_fmac","v_dot2c","v_pk_fmac")): rd |= wr
        if mn.startswith("v_permlane") and "swap" in mn: wr |= regs_of(ops[1]); rd |= wr
    elif mn.startswith("ds_"):
        kind = "ds"
        if "read" in mn: wr = regs_of(ops[0]); rd = regs_of(ops[1])
        else:
            for o in ops: rd |= regs_of(o)
    elif mn.startswith(("buffer_","global_")):
        kind = "vmem"
        line = ",".join(ops)
        if "load" in mn and not re.search(r"\blds\b", line):
            wr = regs_of(ops[0])
            for o in ops[1:]: rd |= regs_of(o)
        else:
            for o in ops: rd |= regs_of(o)
            if re.search(r"\blds\b", line): rd.add(("m0",0))
    elif mn.startswith("s_"):
        kind = "salu"
        if mn in ("s_waitcnt","s_barrier","s_nop","s_endpgm","s_setprio","s_sleep") or mn.startswith(("s_cbranch","s_branch","s_cmp")):
            for o in ops: rd |= regs_of(o)
        else:
            if ops: wr = regs_of(ops[0])
            for o in ops[1:]: rd |= regs_of(o)
    return kind, wr, rd
def check_hazards(text):
    ins = []
    for ln, line in enumerate(text.split("\n"), 1):
        p = parse(line)
        if p is None: continue
        mn, ops = p
        k, wr, rd = classify(mn, ops)
        ws = (int(ops[0], 0) + 1) if mn == "s_nop" else 1
        ins.append((ln, mn, ops, k, wr, rd, ws))
    errs = []
    for i, (ln, mn, ops, k, wr, rd, ws) in enumerate(ins):
        dist = 0
        for j in range(i - 1, max(-1, i - 24), -1):
            ln2, mn2, ops2, k2, wr2, rd2, ws2 = ins[j]
            if mn2 in ("s_endpgm", "s_branch", "s_setpc_b64"): break
            need = 0
            vw2 = {r for r in wr2 if r[0] in "va"}
            sw2 = {r for r in wr2 if r[0] == "s" or r[0] == "vcc"}
            if k2 == "valu" and k == "mfma" and vw2 & rd: need = max(need, 2)
            if k2 == "mfma":
                passes = 8 if "32x32x16" in mn2 else 4
                if k == "mfma":
                    c = regs_of(ops[3]); ab = regs_of(ops[1]) | regs_of(ops[2])
                    if wr2 & ab: need = max(need, passes + 4)
                    if wr2 & c and not (wr2 == c and mn2 == mn): need = max(need, passes + 2)
                elif k in ("valu", "ds", "vmem") and (wr2 & (rd | wr)): need = max(need, passes + 4)
                if k == "valu" and (regs_of(ops2[3]) & wr): need = max(need, passes - 1)
            if k2 == "valu" and mn2.startswith(TRANS) and k in ("valu","mfma") and not mn.startswith(TRANS) and vw2 & rd: need = max(need, 1 if k=="valu" else 2)
            if k2 == "valu" and sw2 and k == "vmem" and sw2 & rd: need = max(need, 5)
            if k2 == "valu" and sw2 and k == "valu" and sw2 & rd: need = max(need, 2)
            if k2 == "valu" and mn.startswith(("v_readfirstlane","v_readlane")) and vw2 & rd: need = max(need, 1)
            if k2 == "valu" and ("dpp" in mn or "permlane" in mn) and vw2 & rd: need = max(need, 2)
            if k2 == "salu" and ("m0",0) in wr2 and k == "vmem" and ("m0",0) in rd: need = max(need, 1)
            if k2 == "vmem" and "store" in mn2 and ("x4" in mn2 or "x3" in mn2) and k in ("valu",) and regs_of(ops2[0]) & wr: need = max(need, 2)
            if k2 == "valu" and ("exec",0) in wr2 and k == "mfma": need = max(need, 4)
            if need > dist:
                errs.append(f"line {ln}: {mn} {','.join(ops)}  needs {need} ws after line {ln2}: {mn2} {','.join(ops2)} (have {dist})")
            dist += ws2
            if dist >= 20: break
    return errs
```

```python
import sys
from asmlib import *
NAME = "gated_mix__ssm_conv_h3__glu_gated_glu__prompt"
EPOCH=0; S1FLAG=0x1000; HFLAG=0x2000; YFLAG=0x4000; GATE=0x8000; STAMP=0x10000
KVR=0x100000; WDT=0x400000; HT=0x600000; YTW=0xC00000; WS_SIZE=0x1000000
OOB = 0x80000000
SLOT=20480

class Cfg:
    R = 6
    mimic_h = True
    mimic_o = True
    stamps = False
    spin_max = 1 << 16
cfg = Cfg()

def gen(cfg):
    R = cfg.R
    CB = R*SLOT
    HE=0; HO=4160; XR=8320; CSZ=12928
    T1 = CB; PT = CB + 11520; DUMMY = CB + 19712
    LDS_BYTES = CB + 3*CSZ + 128
    assert LDS_BYTES <= 163840
    RED=0; YT=61440; QT=71680; OT=81920
    a = Asm()
    NST = 20
    sWAVE=3; sX=4; sJ=5; sRB128=6; sFB=7; sRB64=8; sCB=9; sTAG=10
    pQ,pK,pV,pSH,pSK,pSD,pBX,pWG,pWU,pWD,pGW,pOUT,pDBG,pWS = [16+2*i for i in range(14)]
    rWS=44; rX=48; rW=52; rM1=56; rM2=60; rM3=64
    stamp_i = [0]
    def srd(r, p, size):
        a(f"s_mov_b64 s[{r}:{r+1}], s[{p}:{p+1}]\ns_mov_b32 s{r+2}, {size}\ns_mov_b32 s{r+3}, 0x20000")
    def stamp(k):
        if cfg.stamps:
            a(f"s_memtime s[{80+2*k}:{81+2*k}]")
    def stamp_store(n, vtmp):
        if not cfg.stamps: return
        a("s_waitcnt lgkmcnt(0)")
        a(f"s_lshl_b32 s11, s2, 3\ns_add_u32 s11, s11, s{sWAVE}\ns_lshl_b32 s11, s11, 6\ns_add_u32 s11, s11, {STAMP}")
        a(f"v_mov_b32 v{vtmp+1}, 0")
        for k in range(n):
            a(f"v_mov_b32 v{vtmp}, s{80+2*k}\nbuffer_store_dword v{vtmp}, v{vtmp+1}, s[{rWS}:{rWS+3}], s11 offen offset:{4*k}\ns_nop 1")
        a("s_waitcnt vmcnt(0)")
    lab = [0]
    def spin(voff, soff_expr_sgpr, vtmp, name):
        lab[0] += 1; L = f"L_spin{lab[0]}"
        a(f"s_mov_b32 s12, {cfg.spin_max}")
        a.label(L)
        a(f"buffer_load_dword v{vtmp}, v{voff}, s[{rWS}:{rWS+3}], s{soff_expr_sgpr} offen sc1")
        a(f"s_waitcnt vmcnt(0)")
        a(f"v_cmp_ne_u32 vcc, s{sTAG}, v{vtmp}")
        a(f"s_sub_u32 s12, s12, 1")
        a(f"s_cselect_b64 vcc, 0, vcc")
        a(f"s_cmp_eq_u64 vcc, 0")
        a(f"s_cbranch_scc1 {L}_ok")
        a(f"s_sleep 2")
        a(f"s_branch {L}")
        a.label(L + "_ok")

    a("s_cmp_ge_u32 s2, 256\ns_cbranch_scc1 L_end")
    a("s_load_dwordx16 s[16:31], s[0:1], 0\ns_load_dwordx8 s[32:39], s[0:1], 64\ns_load_dwordx4 s[40:43], s[0:1], 96")
    stamp(0)
    a("v_lshrrev_b32 v2, 6, v0\nv_and_b32 v1, 63, v0")
    a("s_getpc_b64 s[14:15]")
    a.label("L_pc")
    a("v_lshlrev_b32 v3, 7, v0\nv_min_u32 v3, L_code_end-L_pc-4, v3")
    a(f"v_readfirstlane_b32 s{sWAVE}, v2")
    a("v_cmp_gt_u32 vcc, (L_code_end-L_pc+127)/128, v0\ns_and_saveexec_b64 s[12:13], vcc\ns_cbranch_execz L_nopf")
    a("global_load_dword v47, v3, s[14:15]")
    a.label("L_nopf")
    a("s_mov_b64 exec, -1")
    a(f"""s_and_b32 s{sX}, s2, 7
        s_lshr_b32 s{sJ}, s2, 3
        s_and_b32 s11, s{sX}, 1
        s_lshr_b32 s12, s{sX}, 1
        s_and_b32 s13, s{sJ}, 7
        s_lshl3_add_u32 s{sRB128}, s11, s13
        s_lshr_b32 s13, s{sJ}, 3
        s_lshl2_add_u32 s{sFB}, s12, s13
        s_and_b32 s13, s{sJ}, 3
        s_lshl2_add_u32 s{sCB}, s11, s13
        s_lshr_b32 s13, s{sJ}, 2
        s_lshl3_add_u32 s{sRB64}, s12, s13
        s_waitcnt lgkmcnt(0)
        s_load_dword s{sTAG}, s[{pWS}:{pWS+1}], {EPOCH}""")
    srd(rWS, pWS, WS_SIZE)
    srd(rX, pQ, 2621440)
    a(f"s_cmp_lt_u32 s{sWAVE}, 4\ns_cbranch_scc1 L_comp")

    sA=68; sLW=69; sLX=70; sOW=71; sOX=72; sOX2=73
    vW0,vW1,vW2,vXo = 4,5,6,7
    a(f"s_sub_u32 s{sA}, s{sWAVE}, 4")
    a(f"s_cmp_lt_u32 s{sA}, 2\ns_cselect_b64 s[{rW}:{rW+1}], s[{pWG}:{pWG+1}], s[{pWU}:{pWU+1}]\ns_mov_b32 s{rW+2}, 1966080\ns_mov_b32 s{rW+3}, 0x20000")
    a("s_mov_b32 s11, 43691\ns_movk_i32 s12, 3072")
    for i, v in enumerate((vW0,vW1,vW2)):
        a(f"""v_add_u32 v8, {64*i}, v1
            v_mul_u32_u24 v9, s11, v8
            v_lshrrev_b32 v9, 19, v9
            v_mul_u32_u24 v10, 12, v9
            v_sub_u32 v8, v8, v10
            v_lshlrev_b32 v8, 4, v8
            v_mad_u32_u24 v{v}, v9, s12, v8""")
        if i: a(f"v_subrev_u32 v{v}, {1024*i}, v{v}")
    a(f"""v_lshrrev_b32 v8, 2, v1
        v_mul_u32_u24 v8, 1280, v8
        v_lshrrev_b32 v9, 4, v1
        v_xor_b32 v9, v9, v1
        v_and_b32 v9, 3, v9
        v_lshl_add_u32 v{vXo}, v9, 4, v8
        s_and_b32 s11, s{sA}, 1
        s_lshr_b32 s12, s{sA}, 1
        s_mul_i32 s{sLW}, s12, 6144
        s_mul_i32 s13, s11, 3072
        s_add_u32 s{sLW}, s{sLW}, s13
        s_lshl_b32 s{sLX}, s{sA}, 11
        s_add_u32 s{sLX}, s{sLX}, 12288
        s_mul_i32 s{sOW}, s{sFB}, 192
        s_mul_i32 s13, s11, 49152
        s_add_u32 s{sOW}, s{sOW}, s13
        s_lshl2_add_u32 s13, s{sRB128}, s{sA}
        s_mul_i32 s{sOX}, s13, 40960
        s_add_u32 s{sOX2}, s{sOX}, 19456""")
    def dma_stage(t):
        sb = (t % R)*SLOT
        a(f"s_add_u32 m0, s{sLW}, {sb}\ns_nop 0")
        for i, v in enumerate((vW0,vW1,vW2)):
            a.vmem(f"buffer_load_dwordx4 v{v}, s[{rW}:{rW+3}], s{sOW} offen offset:{1024*i} lds", f"dma{t}")
        a(f"s_add_u32 m0, s{sLX}, {sb}\ns_add_u32 s{sOW}, s{sOW}, 98304")
        a.vmem(f"buffer_load_dwordx4 v{vXo}, s[{rX}:{rX+3}], s{sOX} offen lds", f"dma{t}")
        a.vmem(f"buffer_load_dwordx4 v{vXo}, s[{rX}:{rX+3}], s{sOX2} offen offset:1024 lds", f"dma{t}")
        a(f"s_add_u32 s{sOX}, s{sOX}, 64\ns_add_u32 s{sOX2}, s{sOX2}, 64")
    a.vm_reset()
    dma_stage(0); dma_stage(1)
    vm_common = list(a.vm)
    a(f"s_cmp_eq_u32 s{sWAVE}, 7\ns_cbranch_scc1 L_svc")

    def aux_loop(side_loads, side):
        side_loads()
        for t in range(2, R): dma_stage(t)
        a(f"s_waitcnt lgkmcnt(0)\ns_mul_i32 s{sTAG}, s{sTAG}, 0x9E3779B1\ns_add_u32 s{sTAG}, s{sTAG}, 0x7F4A7C15")
        a.vm_wait("dma0"); a("s_barrier")
        if -1 in side: side[-1]()
        for t in range(NST):
            if t+1 < NST: a.vm_wait(f"dma{t+1}")
            a("s_barrier")
            if t+R < NST: dma_stage(t+R)
            if t in side: side[t]()

    vK=16; vV=38; vSw=54; vWp=64; vKf=80; vAcc=102; vVf=104; vKV=106; vPk=122
    vKh,vK0,vK1,vSh,vT1 = 8,9,10,11,12
    def s1_loads():
        srd(rM1, pK, 2621440); srd(rM2, pV, 2621440); srd(rM3, pSH, 5120)
        a(f"""s_lshl_b32 s11, s{sA}, 6
            v_add_u32 v13, s11, v1
            v_mul_u32_u24 v14, 3277, v13
            v_lshrrev_b32 v14, 16, v14
            v_mul_u32_u24 v15, 20, v14
            v_sub_u32 v15, v13, v15
            s_mul_i32 s11, s{sRB64}, 81920
            s_mul_i32 s12, s{sCB}, 160
            s_add_u32 s11, s11, s12
            v_mul_u32_u24 v{vK0}, 10240, v14
            v_lshl_add_u32 v{vK0}, v15, 3, v{vK0}
            v_add_u32 v{vK0}, s11, v{vK0}
            s_lshl_b32 s12, s12, 2
            v_lshlrev_b32 v{vSh}, 5, v15
            v_add_u32 v{vSh}, s12, v{vSh}
            v_mul_u32_u24 v{vT1}, 576, v15
            v_lshlrev_b32 v14, 4, v14
            v_sub_u32 v{vT1}, v{vT1}, v14
            v_add_u32 v{vT1}, {T1+112}, v{vT1}
            v_cmp_gt_u32 vcc, 160, v13
            v_mov_b32 v14, {OOB}
            v_mov_b32 v15, {DUMMY}
            v_cndmask_b32 v{vK0}, v14, v{vK0}, vcc
            v_cndmask_b32 v{vT1}, v15, v{vT1}, vcc
            v_subrev_u32 v{vKh}, 3840, v{vK0}
            v_add_u32 v{vK1}, 5120, v{vK0}""")
        a.vmem(f"buffer_load_dwordx4 v[{vSw}:{vSw+3}], v{vSh}, s[{rM3}:{rM3+3}], 0 offen", "side")
        a.vmem(f"buffer_load_dwordx4 v[{vSw+4}:{vSw+7}], v{vSh}, s[{rM3}:{rM3+3}], 0 offen offset:16", "side")
        for r in range(11):
            base, off = (vKh, r*1280) if r < 3 else ((vK0, (r-3)*1280) if r < 7 else (vK1, (r-7)*1280))
            a.vmem(f"buffer_load_dwordx2 v[{vK+2*r}:{vK+2*r+1}], v{base}, s[{rM1}:{rM1+3}], 0 offen offset:{off}", "side")
        for r in range(8):
            base, off = (vK0, r*1280) if r < 4 else (vK1, (r-4)*1280)
            a.vmem(f"buffer_load_dwordx2 v[{vV+2*r}:{vV+2*r+1}], v{base}, s[{rM2}:{rM2+3}], 0 offen offset:{off}", "side")
    def unpack(dlo, dhi, src):
        a(f"v_lshlrev_b32 v{dlo}, 16, v{src}\nv_and_b32 v{dhi}, 0xffff0000, v{src}")
    def s1_chunk(p, half):
        def f():
            if half == 0:
                for cc in range(2):
                    c = 2*p+cc
                    unpack(vWp+0+cc, vWp+2+cc, vSw+2*c)
                    unpack(vWp+4+cc, vWp+6+cc, vSw+2*c+1)
                for r in range(11): unpack(vKf+2*r, vKf+2*r+1, vK+2*r+p)
                rows = range(0, 2)
            else:
                rows = range(2, 8)
            for r in rows:
                A = vKV+2*r
                unpack(vVf, vVf+1, vV+2*r+p)
                a(f"v_pk_mul_f32 v[{A}:{A+1}], v[{vKf+2*r}:{vKf+2*r+1}], v[{vWp+6}:{vWp+7}]")
                for jj in (2,1,0):
                    kr = vKf+2*(r+3-jj)
                    a(f"v_pk_fma_f32 v[{A}:{A+1}], v[{kr}:{kr+1}], v[{vWp+2*jj}:{vWp+2*jj+1}], v[{A}:{A+1}]")
                a(f"v_pk_mul_f32 v[{A}:{A+1}], v[{A}:{A+1}], v[{vVf}:{vVf+1}]")
            if half == 1:
                for cc in range(2):
                    for m in range(4):
                        a(f"v_cvt_pk_bf16_f32 v{vPk+4*cc+m}, v{vKV+2*(7-2*m)+cc}, v{vKV+2*(6-2*m)+cc}")
                    a(f"ds_write_b128 v{vT1}, v[{vPk+4*cc}:{vPk+4*cc+3}] offset:{(2*p+cc)*144}")
                if p == 1: a("s_waitcnt lgkmcnt(0)")
        return f
    def s1_store():
        a(f"""s_lshl_b32 s11, s{sA}, 6
            v_add_u32 v13, s11, v1
            v_lshrrev_b32 v14, 3, v13
            v_and_b32 v15, 7, v13
            v_lshlrev_b32 v15, 4, v15
            v_mul_u32_u24 v8, 144, v14
            v_add3_u32 v8, v8, v15, s{78}
            v_lshl_add_u32 v9, v14, 12, v15
            s_mul_i32 s11, s{sCB}, {80*4096}
            s_lshl_b32 s12, s{sRB64}, 7
            s_sub_u32 s11, s11, s12
            s_add_u32 s11, s11, {KVR+1984*2}
            v_cmp_gt_u32 vcc, 64, v13
            v_mov_b32 v14, {OOB}""")
        for i in range(4):
            a(f"ds_read_b128 v[{vK+4*i}:{vK+4*i+3}], v8 offset:{i*24*144}")
        a("v_cndmask_b32 v10, v14, v9, vcc")
        for i in range(4):
            a(f"s_waitcnt lgkmcnt({3-i})")
            a.vmem(f"buffer_store_dwordx4 v[{vK+4*i}:{vK+4*i+3}], v{9 if i<3 else 10}, s[{rWS}:{rWS+3}], s11 offen sc1", "kvr")
            if i < 3: a(f"s_add_u32 s11, s11, {24*4096}")
    a(f"s_mov_b32 s78, {T1}")
    aux_loop(s1_loads, {1: s1_chunk(0,0), 2: s1_chunk(0,1), 3: s1_chunk(1,0), 4: s1_chunk(1,1), 5: s1_store})
    stamp(1)
    sD=74; sCR=75; sDv=76
    a(f"""s_cmp_lt_u32 s{sRB64}, 16
        s_cselect_b32 s11, 3, 2
        s_cselect_b32 s12, 0, 16
        s_cmp_ge_u32 s{sA}, s11
        s_cbranch_scc1 L_end
        s_mul_i32 s13, s{sRB64}, s11
        s_add_u32 s13, s13, s12
        s_mul_i32 s{sD}, s{sCB}, 80
        s_add_u32 s{sD}, s{sD}, s13
        s_add_u32 s{sD}, s{sD}, s{sA}
        s_mul_i32 s{sCR}, s{sA}, {CSZ}
        s_add_u32 s{sCR}, s{sCR}, {CB}
        s_lshl_b32 s11, s{sD}, 1
        s_and_b32 s11, s11, 0xfffffffc
        s_load_dword s{sDv}, s[{pSD}:{pSD+1}], s11""")
    srd(rM1, pSK, 2621440)
    a(f"""v_lshlrev_b32 v8, 4, v1
        v_add_u32 v9, 2, v8
        s_lshl_b32 s13, s{sD}, 12
        s_add_u32 m0, s{sCR}, {HE+32}
        v_mov_b32 v12, 0
        v_mov_b32 v13, 0""")
    for i in range(4): a(f"buffer_load_dwordx4 v8, s[{rM1}:{rM1+3}], s13 offen offset:{1024*i} lds")
    a(f"s_add_u32 m0, s{sCR}, {HO+32}\ns_nop 0")
    for i in range(4): a(f"buffer_load_dwordx4 v9, s[{rM1}:{rM1+3}], s13 offen offset:{1024*i} lds")
    a(f"""v_lshlrev_b32 v10, 3, v1
        v_add_u32 v10, s{sCR}, v10
        ds_write_b64 v10, v[12:13] offset:{XR+4096}
        v_and_b32 v11, 3, v1
        v_lshlrev_b32 v11, 3, v11
        v_add_u32 v11, s{sCR}, v11
        ds_write_b64 v11, v[12:13] offset:{HE}
        ds_write_b64 v11, v[12:13] offset:{HO}
        v_and_b32 v14, 31, v1
        v_lshlrev_b32 v14, 2, v14
        s_lshl_b32 s11, s{sCB}, 7
        s_add_u32 s11, s11, {S1FLAG}""")
    spin(14, 11, 15, "s1")
    a(f"""s_lshl_b32 s13, s{sD}, 12
        s_add_u32 s13, s13, {KVR}
        s_add_u32 m0, s{sCR}, {XR}
        s_nop 0""")
    for i in range(4): a(f"buffer_load_dwordx4 v8, s[{rWS}:{rWS+3}], s13 offen offset:{1024*i} sc1 lds")
    a(f"""v_mov_b32 v10, s{sCR}
        ds_read_b32 v11, v10 offset:{HE+32}
        s_waitcnt lgkmcnt(0)
        v_lshlrev_b32 v11, 16, v11
        ds_write_b32 v10, v11 offset:{HO+28}""")
    vA=[16,17,18,19]; vB=20; vE=21
    a(f"""v_and_b32 v10, 15, v1
        v_lshrrev_b32 v11, 4, v1
        v_and_b32 v12, 1, v1
        v_lshlrev_b32 v13, 1, v10
        v_lshl_add_u32 v13, v11, 4, v13
        v_cmp_eq_u32 vcc, 1, v12
        v_mov_b32 v14, {HO+32-32}
        v_mov_b32 v15, {HE+32-30}
        v_cndmask_b32 v14, v14, v15, vcc
        v_add3_u32 v{vA[0]}, v13, v14, s{sCR}
        v_add_u32 v{vA[1]}, 1024, v{vA[0]}
        v_add_u32 v{vA[2]}, 2048, v{vA[0]}
        v_add_u32 v{vA[3]}, 3072, v{vA[0]}
        v_lshlrev_b32 v13, 5, v10
        v_lshlrev_b32 v14, 4, v11
        v_sub_u32 v14, v14, v13
        v_add_u32 v14, {XR+4064-3584}, v14
        v_add_u32 v{vB}, s{sCR}, v14
        v_lshlrev_b32 v14, 3, v11
        v_add_u32 v14, v14, v13
        v_sub_u32 v{vE}, {XR+4088-3584}, v14
        v_add_u32 v{vE}, s{sCR}, v{vE}""")
    cAcc=32; cS=[64,128]
    for i in range(32): a(f"v_mov_b32 v{cAcc+i}, 0")
    def conv_reads(st, cp):
        base = cS[st]; out = []
        def rdA(C):
            o = (C&1)*128 + cp*16
            r = base+4*C
            return [f"ds_read2_b32 v[{r}:{r+1}], v{vA[C>>1]} offset0:{o} offset1:{o+1}",
                    f"ds_read2_b32 v[{r+2}:{r+3}], v{vA[C>>1]} offset0:{o+2} offset1:{o+3}"]
        def rdB(U):
            r = base+32+4*U
            return [f"ds_read_b128 v[{r}:{r+3}], v{vB} offset:{(7-U)*512+cp*64}"]
        out += rdA(0)
        for U in range(8): out += rdB(U)
        for C in range(1,8): out += rdA(C)
        return out
    def conv_mfmas(st):
        base = cS[st]; out = []
        for C in range(8):
            for J in range(C, 8):
                U = J-C
                out.append(f"v_mfma_f32_16x16x32_bf16 v[{cAcc+4*J}:{cAcc+4*J+3}], v[{base+4*C}:{base+4*C+3}], v[{base+32+4*U}:{base+32+4*U+3}], v[{cAcc+4*J}:{cAcc+4*J+3}]")
        return out
    a("s_waitcnt vmcnt(0) lgkmcnt(0)")
    stamp(2)
    for l in conv_reads(0, 0): a(l)
    a("s_mov_b32 s11, 4")
    a.label("L_conv")
    for st in range(2):
        a("s_waitcnt lgkmcnt(0)")
        if st == 1:
            for v in vA + [vB]: a(f"v_add_u32 v{v}, 128, v{v}")
        rd = conv_reads(1-st, 1 if st == 0 else 0)
        mf = conv_mfmas(st)
        for i, m in enumerate(mf):
            a(m)
            if i < len(rd): a(rd[i])
    a("s_sub_u32 s11, s11, 1\ns_cmp_lg_u32 s11, 0\ns_cbranch_scc1 L_conv")
    stamp(3)
    a(f"""s_waitcnt lgkmcnt(0)
        s_bitcmp1_b32 s{sD}, 0
        s_cselect_b32 s12, 0, 16
        s_lshl_b32 s{sDv}, s{sDv}, s12
        s_and_b32 s{sDv}, s{sDv}, 0xffff0000""")
    for J in range(8): a(f"ds_read_b64 v[{64+2*J}:{65+2*J}], v{vE} offset:{(7-J)*512}")
    a(f"""v_and_b32 v10, 15, v1
        v_lshrrev_b32 v11, 4, v1
        v_lshlrev_b32 v10, 5, v10
        v_lshl_add_u32 v10, v11, 3, v10
        v_add_u32 v10, s{sCR}, v10
        v_add_u32 v11, s{sCR}, v8
        s_waitcnt lgkmcnt(0)""")
    for J in range(8):
        A = cAcc+4*J; K = 64+2*J; T = 96
        a(f"""v_and_b32 v{T}, 0xffff0000, v{K+1}
            v_lshlrev_b32 v{T+1}, 16, v{K+1}
            v_and_b32 v{T+2}, 0xffff0000, v{K}
            v_lshlrev_b32 v{T+3}, 16, v{K}
            v_mul_f32 v{T}, s{sDv}, v{T}
            v_mul_f32 v{T+1}, s{sDv}, v{T+1}
            v_mul_f32 v{T+2}, s{sDv}, v{T+2}
            v_mul_f32 v{T+3}, s{sDv}, v{T+3}
            v_cvt_pk_bf16_f32 v{T+4}, v{T}, v{T+1}
            v_cvt_pk_bf16_f32 v{T+5}, v{T+2}, v{T+3}
            v_cvt_pk_bf16_f32 v{T+6}, v{A}, v{A+1}
            v_cvt_pk_bf16_f32 v{T+7}, v{A+2}, v{A+3}""")
        unpack(T, T+1, T+4); unpack(T+2, T+3, T+5); unpack(A, A+1, T+6); unpack(A+2, A+3, T+7)
        a(f"""v_pk_add_f32 v[{A}:{A+1}], v[{A}:{A+1}], v[{T}:{T+1}]
            v_pk_add_f32 v[{A+2}:{A+3}], v[{A+2}:{A+3}], v[{T+2}:{T+3}]
            v_cvt_pk_bf16_f32 v{K}, v{A}, v{A+1}
            v_cvt_pk_bf16_f32 v{K+1}, v{A+2}, v{A+3}
            ds_write_b64 v10, v[{K}:{K+1}] offset:{512*J}""")
    a("s_waitcnt lgkmcnt(0)")
    for i in range(4): a(f"ds_read_b128 v[{96+4*i}:{99+4*i}], v11 offset:{1024*i}")
    a(f"s_lshl_b32 s13, s{sD}, 12\ns_add_u32 s13, s13, {YTW}")
    for i in range(4):
        a(f"s_waitcnt lgkmcnt({3-i})\nbuffer_store_dwordx4 v[{96+4*i}:{99+4*i}], v8, s[{rWS}:{rWS+3}], s13 offen offset:{1024*i} sc1")
    a(f"""s_lshl_b32 s13, s{sD}, 2
        s_add_u32 s13, s13, {YFLAG}
        v_mov_b32 v12, s{sTAG}
        v_mov_b32 v13, 0
        s_waitcnt vmcnt(0)
        s_mov_b64 exec, 1
        buffer_store_dword v12, v13, s[{rWS}:{rWS+3}], s13 offen sc1
        s_mov_b64 exec, -1""")
    stamp(4)
    stamp_store(5, 10)
    a("s_endpgm")

    a.label("L_svc")
    a.vm = list(vm_common)
    gX=16; gW=56; pF=100
    def svc_loads():
        srd(rM1, pWD, 1966080); srd(rM2, pGW, 1280)
        a(f"""s_and_b32 s11, s{sFB}, 1
            s_lshl1_add_u32 s11, s{sRB128}, s11
            s_lshl_b32 s11, s11, 6
            s_lshr_b32 s12, s{sFB}, 2
            s_lshl4_add_u32 s11, s12, s11
            s_bfe_u32 s12, s{sFB}, 0x10001
            s_lshl3_add_u32 s77, s12, s11
            s_mul_i32 s11, s77, 1280
            v_lshrrev_b32 v8, 3, v1
            v_and_b32 v9, 7, v1
            v_lshlrev_b32 v9, 4, v9
            v_mul_u32_u24 v10, 1280, v8
            v_add_u32 v10, v10, v9""")
        for it in range(10):
            a.vmem(f"buffer_load_dwordx4 v[{gX+4*it}:{gX+4*it+3}], v10, s[{rX}:{rX+3}], s11 offen offset:{128*it}", "side")
            a.vmem(f"buffer_load_dwordx4 v[{gW+4*it}:{gW+4*it+3}], v9, s[{rM2}:{rM2+3}], 0 offen offset:{128*it}", "side")
        a(f"""s_mul_i32 s11, s{sRB64}, {48*1280}
            s_mul_i32 s12, s{sCB}, 160
            s_add_u32 s11, s11, s12
            s_movk_i32 s12, 1280
            s_mov_b32 m0, {PT}""")
        for n in range(8):
            a(f"""v_add_u32 v11, {64*n}, v1
                v_mul_u32_u24 v12, 6554, v11
                v_lshrrev_b32 v12, 16, v12
                v_mul_u32_u24 v13, 10, v12
                v_sub_u32 v13, v11, v13
                v_lshlrev_b32 v13, 4, v13
                v_mad_u32_u24 v13, v12, s12, v13""")
            if n == 7:
                a(f"v_cmp_gt_u32 vcc, 32, v1\nv_mov_b32 v12, {OOB}\ns_nop 0\nv_cndmask_b32 v13, v12, v13, vcc")
            a.vmem(f"buffer_load_dwordx4 v13, s[{rM1}:{rM1+3}], s11 offen lds", "side")
            if n < 7: a(f"s_add_u32 m0, m0, 1024")
    def svc_count():
        srd(rM3, pDBG, 256)
        a(f"v_mov_b32 v11, 1\nv_mov_b32 v12, 0\ns_mov_b64 exec, 1")
        a.vmem(f"buffer_atomic_add v11, v12, s[{rM3}:{rM3+3}], 0 offen sc1", "cnt")
        a("s_mov_b64 exec, -1")
    def svc_pretile():
        a(f"""v_bfe_u32 v11, v1, 4, 1
            v_bfe_u32 v12, v1, 2, 2
            v_lshl_add_u32 v12, v11, 2, v12
            v_mul_u32_u24 v12, 160, v12
            v_lshrrev_b32 v13, 5, v1
            v_lshl_add_u32 v12, v13, 5, v12
            v_and_b32 v14, 3, v1
            v_lshl_add_u32 v12, v14, 3, v12
            v_add_u32 v12, {PT}, v12
            v_and_b32 v14, 15, v1
            v_lshl_add_u32 v14, v11, 5, v14
            v_lshlrev_b32 v14, 4, v14
            v_lshl_add_u32 v14, v13, 10, v14
            v_cmp_gt_u32 vcc, 32, v1
            v_mov_b32 v15, {OOB}""")
        for m in range(3):
            for u in range(3):
                r = pF + 4*(3*m+u)
                a(f"ds_read_b64_tr_b16 v[{r}:{r+1}], v12 offset:{m*2560+u*64}\nds_read_b64_tr_b16 v[{r+2}:{r+3}], v12 offset:{m*2560+u*64+1280}")
            if m == 0: a("v_cndmask_b32 v15, v15, v14, vcc")
        a(f"s_mul_i32 s13, s{sRB64}, 3\ns_mul_i32 s14, s{sCB}, 48")
        a("s_waitcnt lgkmcnt(0)")
        for m in range(3):
            a(f"""s_add_u32 s11, s13, {m}
                s_lshr_b32 s12, s11, 1
                s_add_u32 s12, s12, s14
                s_mul_i32 s12, s12, 5120
                s_and_b32 s11, s11, 1
                s_lshl_b32 s11, s11, 8
                s_add_u32 s11, s11, s12
                s_add_u32 s11, s11, {WDT}
                s_add_u32 s12, s11, 4096""")
            for u in range(3):
                r = pF + 4*(3*m+u)
                if u < 2: a.vmem(f"buffer_store_dwordx4 v[{r}:{r+3}], v14, s[{rWS}:{rWS+3}], s11 offen offset:{2048*u} sc1", "wdt")
                else:     a.vmem(f"buffer_store_dwordx4 v[{r}:{r+3}], v15, s[{rWS}:{rWS+3}], s12 offen sc1", "wdt")
    def svc_gate():
        a("v_mov_b32 v11, 0\nv_mov_b32 v12, 0")
        for i in range(40): a(f"v_dot2c_f32_bf16 v{11+(i&1)}, v{gX+i}, v{gW+i}")
        a("""s_nop 3
            v_add_f32 v11, v11, v12
            s_nop 1
            v_add_f32_dpp v11, v11, v11 quad_perm:[1,0,3,2] row_mask:0xf bank_mask:0xf
            s_nop 1
            v_add_f32_dpp v11, v11, v11 quad_perm:[2,3,0,1] row_mask:0xf bank_mask:0xf
            s_nop 1
            v_add_f32_dpp v11, v11, v11 row_half_mirror row_mask:0xf bank_mask:0xf
            v_cvt_pk_bf16_f32 v11, v11, v11
            v_lshlrev_b32 v11, 16, v11
            v_mul_f32 v11, 0xbfb8aa3b, v11
            v_exp_f32 v11, v11
            s_nop 0
            v_add_f32 v11, 1.0, v11
            v_rcp_f32 v11, v11
            s_nop 0
            v_cvt_pk_bf16_f32 v11, v11, v11
            v_lshlrev_b32 v11, 16, v11
            v_sub_f32 v12, 1.0, v11
            v_cvt_pk_bf16_f32 v11, v11, v12""")
        a(f"""v_lshlrev_b32 v13, 2, v8
            v_cmp_eq_u32 vcc, 0, v9
            v_mov_b32 v14, {OOB}
            s_lshl_b32 s11, s77, 2
            s_add_u32 s11, s11, {GATE}
            v_cndmask_b32 v13, v14, v13, vcc""")
        a.vmem(f"buffer_store_dword v11, v13, s[{rWS}:{rWS+3}], s11 offen sc1", "gate")
    def svc_flag():
        a(f"""s_lshl_b32 s11, s{sCB}, 5
            s_add_u32 s11, s11, s{sRB64}
            s_lshl_b32 s11, s11, 2
            s_add_u32 s11, s11, {S1FLAG}
            v_mov_b32 v11, s{sTAG}
            v_mov_b32 v12, 0
            s_mov_b64 exec, 1""")
        a.vmem(f"buffer_store_dword v11, v12, s[{rWS}:{rWS+3}], s11 offen sc1", "flag")
        a("s_mov_b64 exec, -1")
    aux_loop(svc_loads, {-1: svc_count, 1: svc_pretile, 2: svc_gate, 5+R: svc_flag})
    a("s_endpgm")

    a.label("L_comp")
    vWa,vXa,vXb,vWc,vXc,vXd = 4,5,6,7,8,9
    FS=[48,104]; ACC=160
    a(f"""v_lshrrev_b32 v10, 5, v1
        v_bfe_u32 v11, v1, 2, 2
        v_lshl_add_u32 v11, v10, 3, v11
        v_mul_u32_u24 v{vWa}, 192, v11
        v_bfe_u32 v11, v1, 4, 1
        v_lshl_add_u32 v{vWa}, v11, 5, v{vWa}
        v_and_b32 v11, 3, v1
        v_lshl_add_u32 v{vWa}, v11, 3, v{vWa}
        v_and_b32 v11, 31, v1
        v_bfe_u32 v12, v1, 2, 2
        v_xor_b32 v12, v12, v10
        v_lshlrev_b32 v12, 4, v12
        v_lshl_add_u32 v12, v11, 6, v12
        s_lshl_b32 s11, s{sWAVE}, 11
        s_add_u32 s11, s11, 12288
        v_add_u32 v{vXa}, s11, v12
        v_xor_b32 v{vXb}, 32, v{vXa}""")
    for i in range(96): a(f"v_mov_b32 v{ACC+i}, 0")
    def g1_reads(st, w, x0, x1):
        b = FS[st]; out = []
        for kk in range(2):
            out.append(f"ds_read_b128 v[{b+48+4*kk}:{b+51+4*kk}], v{x0 if kk==0 else x1}")
            for ft in range(3):
                for mat in range(2):
                    r = b + ((kk*3+ft)*2+mat)*4
                    o = mat*6144 + kk*3072 + ft*64
                    out.append(f"ds_read_b64_tr_b16 v[{r}:{r+1}], v{w} offset:{o}")
                    out.append(f"ds_read_b64_tr_b16 v[{r+2}:{r+3}], v{w} offset:{o+768}")
        return out
    def g1_mfmas(st):
        b = FS[st]; out = []
        for kk in range(2):
            for ft in range(3):
                for mat in range(2):
                    r = b + ((kk*3+ft)*2+mat)*4
                    c = ACC + (mat*3+ft)*16
                    out.append(f"v_mfma_f32_32x32x16_bf16 v[{c}:{c+15}], v[{r}:{r+3}], v[{b+48+4*kk}:{b+51+4*kk}], v[{c}:{c+15}]")
        return out
    a(f"s_waitcnt lgkmcnt(0)\ns_mul_i32 s{sTAG}, s{sTAG}, 0x9E3779B1\ns_add_u32 s{sTAG}, s{sTAG}, 0x7F4A7C15")
    a("s_barrier")
    stamp(1)
    for l in g1_reads(0, vWa, vXa, vXb): a(l)
    sSB=68; sIT=69
    a(f"s_mov_b32 s{sSB}, 0\ns_mov_b32 s{sIT}, {NST//2}")
    a.label("L_g1")
    for st in range(2):
        a(f"""s_add_u32 s{sSB}, s{sSB}, {SLOT}
            s_cmp_eq_u32 s{sSB}, {R*SLOT}
            s_cselect_b32 s{sSB}, 0, s{sSB}
            v_add_u32 v{vWc}, s{sSB}, v{vWa}
            v_add_u32 v{vXc}, s{sSB}, v{vXa}
            v_add_u32 v{vXd}, s{sSB}, v{vXb}
            s_waitcnt lgkmcnt(0)
            s_barrier""")
        rd = g1_reads(1-st, vWc, vXc, vXd); mf = g1_mfmas(st)
        k = 0
        for i, m in enumerate(mf):
            a(m)
            n = 3 if i < 8 else 2 if i == 8 else 0
            for _ in range(n):
                if k < len(rd): a(rd[k]); k += 1
        assert k == len(rd)
    a(f"s_sub_u32 s{sIT}, s{sIT}, 1\ns_cmp_lg_u32 s{sIT}, 0\ns_cbranch_scc1 L_g1")
    stamp(2)
    a(f"""s_lshr_b32 s11, s{sWAVE}, 1
        s_lshl1_add_u32 s11, s{sRB128}, s11
        s_mul_i32 s12, s11, {48*4096}
        s_mul_i32 s13, s{sFB}, {3*4096}
        s_add_u32 s12, s12, s13
        s_and_b32 s13, s{sWAVE}, 1
        s_lshl_b32 s14, s13, 11
        s_add_u32 s12, s12, s14
        s_add_u32 s70, s12, {HT}
        s_lshl_b32 s11, s11, 7
        s_lshl3_add_u32 s11, s{sFB}, s11
        s_lshl2_add_u32 s11, s13, s11
        s_add_u32 s71, s11, {HFLAG}
        v_and_b32 v10, 15, v1
        v_lshlrev_b32 v10, 4, v10
        v_bfe_u32 v11, v1, 4, 1
        v_lshl_add_u32 v10, v11, 10, v10
        v_lshrrev_b32 v11, 5, v1
        v_lshl_add_u32 v10, v11, 9, v10
        s_mov_b32 s72, 0xbfb8aa3b
        s_mov_b32 s73, 0xbfb8aa3b
        s_waitcnt lgkmcnt(0)
        s_nop 7""")
    T = 48
    for ft in range(3):
        G = ACC + ft*16; U = ACC + (3+ft)*16; O = T + 32 + 8*(ft & 1)
        for grp in range(2):
            prs = [8*grp + 2*i for i in range(4)]
            if cfg.mimic_h:
                for i, e in enumerate(prs): a(f"v_cvt_pk_bf16_f32 v{T+i}, v{G+e}, v{G+e+1}")
                for i, e in enumerate(prs): a(f"v_cvt_pk_bf16_f32 v{T+4+i}, v{U+e}, v{U+e+1}")
                for i, e in enumerate(prs): unpack(G+e, G+e+1, T+i)
                for i, e in enumerate(prs): unpack(U+e, U+e+1, T+4+i)
            for e in prs: a(f"v_pk_mul_f32 v[{G+e}:{G+e+1}], v[{G+e}:{G+e+1}], s[72:73]")
            for e in prs: a(f"v_exp_f32 v{G+e}, v{G+e}\nv_exp_f32 v{G+e+1}, v{G+e+1}")
            for e in prs: a(f"v_pk_add_f32 v[{G+e}:{G+e+1}], v[{G+e}:{G+e+1}], 1.0 op_sel_hi:[1,0]")
            for e in prs: a(f"v_rcp_f32 v{G+e}, v{G+e}\nv_rcp_f32 v{G+e+1}, v{G+e+1}")
            if cfg.mimic_h:
                for i, e in enumerate(prs): a(f"v_cvt_pk_bf16_f32 v{T+i}, v{G+e}, v{G+e+1}")
                for i, e in enumerate(prs): unpack(G+e, G+e+1, T+i)
            for e in prs: a(f"v_pk_mul_f32 v[{G+e}:{G+e+1}], v[{G+e}:{G+e+1}], v[{U+e}:{U+e+1}]")
            for i, e in enumerate(prs): a(f"v_cvt_pk_bf16_f32 v{O+4*grp+i}, v{G+e}, v{G+e+1}")
            a(f"buffer_store_dwordx4 v[{O+4*grp}:{O+4*grp+3}], v10, s[{rWS}:{rWS+3}], s70 offen offset:{256*grp} sc1")
        if ft < 2: a(f"s_add_u32 s70, s70, 4096")
    stamp(3)
    vL=4; vL4=5; vH=[6,7,8,9]; vRW=[10,11,12]; vGt=13; vG3=[14,15,16]; vF=17
    G2S=[32+36*i for i in range(4)]; AC2=176
    sHo=72; sWo=73
    a(f"""v_lshlrev_b32 v{vL}, 4, v1
        v_add_u32 v{vL4}, 4096, v{vL}
        v_and_b32 v{vF}, 31, v1
        v_lshlrev_b32 v{vF}, 2, v{vF}
        s_lshl_b32 s11, s{sCB}, 7
        s_add_u32 s11, s11, {S1FLAG}""")
    spin(vF, 11, 18, "s1c")
    a(f"""v_mov_b32 v18, s{sTAG}
        v_mov_b32 v19, 0
        s_mov_b64 exec, 1
        buffer_store_dword v18, v19, s[{rWS}:{rWS+3}], s71 offen sc1
        s_mov_b64 exec, -1
        s_mul_i32 s11, s{sWAVE}, 12
        s_mul_i32 s12, s{sCB}, 48
        s_add_u32 s12, s12, s11
        s_mul_i32 s{sWo}, s12, 5120
        s_add_u32 s{sWo}, s{sWo}, {WDT}
        s_mul_i32 s12, s{sRB64}, 48
        s_add_u32 s12, s12, s11
        s_lshl_b32 s{sHo}, s12, 12
        s_add_u32 s{sHo}, s{sHo}, {HT}""")
    a.vm_reset()
    def ld_wd(st, tag):
        b = G2S[st]
        for nt in range(5):
            a.vmem(f"buffer_load_dwordx4 v[{b+4*nt}:{b+4*nt+3}], v{vL if nt<4 else vL4}, s[{rWS}:{rWS+3}], s{sWo} offen offset:{1024*(nt&3)} sc1", tag)
        a(f"s_add_u32 s{sWo}, s{sWo}, 5120")
    def ld_h(st, tag):
        b = G2S[st] + 20
        for m in range(4):
            a.vmem(f"buffer_load_dwordx4 v[{b+4*m}:{b+4*m+3}], v{vH[m]}, s[{rWS}:{rWS+3}], s{sHo} offen sc1", tag)
        a(f"s_add_u32 s{sHo}, s{sHo}, 4096")
    for st in range(4): ld_wd(st, f"w{st}")
    for m in range(4):
        a(f"s_add_u32 s11, s{sWAVE}, {m}\ns_and_b32 s11, s11, 3\ns_lshl_b32 s12, s11, 10\nv_add_u32 v{vH[m]}, s12, v{vL}")
        if m: a(f"s_mul_i32 s12, s11, 15360\ns_add_u32 s12, s12, {RED+(m-1)*5120}\nv_add_u32 v{vRW[m-1]}, s12, v{vL}")
    for n in range(3):
        a(f"""v_add_u32 v18, {64*n}, v1
            v_mul_u32_u24 v19, 6554, v18
            v_lshrrev_b32 v19, 16, v19
            v_mul_u32_u24 v20, 10, v19
            v_sub_u32 v20, v18, v20
            v_lshlrev_b32 v20, 4, v20
            v_mul_u32_u24 v19, 1280, v19
            v_add_u32 v{vG3[n]}, v19, v20""")
    a(f"v_cmp_gt_u32 vcc, 32, v1\nv_mov_b32 v18, {OOB}\ns_nop 0\nv_cndmask_b32 v{vG3[2]}, v18, v{vG3[2]}, vcc")
    sRC=74
    a(f"""s_lshl2_add_u32 s11, s{sRB64}, s{sWAVE}
        s_mul_i32 s{sRC}, s11, {16*1280}
        s_mul_i32 s12, s{sCB}, 160
        s_add_u32 s{sRC}, s{sRC}, s12
        s_lshl_b32 s75, s11, 6
        s_add_u32 s75, s75, {GATE}
        s_mul_i32 s76, s{sWAVE}, 2560""")
    for i in range(80): a(f"v_mov_b32 v{AC2+i}, 0")
    for n in range(3):
        a(f"s_add_u32 m0, s76, {QT+1024*n}\n" + ("s_mov_b32 exec_hi, 0" if n == 2 else "s_nop 0"))
        a.vmem(f"buffer_load_dwordx4 v{vG3[n]}, s[{rX}:{rX+3}], s{sRC} offen lds", "q")
    a("s_mov_b32 exec_hi, -1")
    a(f"""v_and_b32 v{vF}, 7, v1
        v_lshlrev_b32 v{vF}, 2, v{vF}
        s_lshl_b32 s11, s{sRB64}, 7
        s_lshl_b32 s12, s{sWAVE}, 5
        s_add_u32 s11, s11, s12
        s_add_u32 s11, s11, {HFLAG}""")
    spin(vF, 11, 18, "h")
    stamp(4)
    a.vm_reset()
    for st in range(4): ld_h(st, f"h{st}")
    a(f"v_and_b32 v18, 15, v1\nv_lshlrev_b32 v18, 2, v18")
    a.vmem(f"buffer_load_dword v{vGt}, v18, s[{rWS}:{rWS+3}], s75 offen sc1", "gate")
    def g2_mfmas(st):
        b = G2S[st]
        for m in range(4):
            for nt in range(5):
                c = AC2 + (m*5+nt)*4
                a(f"v_mfma_f32_16x16x32_bf16 v[{c}:{c+3}], v[{b+4*nt}:{b+4*nt+3}], v[{b+20+4*m}:{b+23+4*m}], v[{c}:{c+3}]")
    for step in range(12):
        st = step & 3
        a.vm_wait(f"h{step}")
        g2_mfmas(st)
        if step + 4 < 12:
            ld_wd(st, f"w{step+4}"); ld_h(st, f"h{step+4}")
        if step == 8:
            a(f"""v_min_u32 v{vF}, 19, v1
                v_lshlrev_b32 v{vF}, 2, v{vF}
                s_mul_i32 s11, s{sCB}, 80
                s_mul_i32 s12, s{sWAVE}, 20
                s_add_u32 s77, s11, s12
                s_lshl_b32 s11, s77, 2
                s_add_u32 s11, s11, {YFLAG}""")
            spin(vF, 11, 18, "y")
            a.vm = ["old"] + [f"h{i}" for i in range(12)]
            a(f"""v_lshrrev_b32 v18, 3, v1
                v_and_b32 v19, 7, v1
                v_lshlrev_b32 v19, 4, v19
                v_lshl_add_u32 v18, v18, 12, v19
                v_cmp_gt_u32 vcc, 32, v1
                v_mov_b32 v19, {OOB}
                s_lshl_b32 s11, s77, 12
                s_lshl_b32 s12, s{sRB64}, 7
                s_add_u32 s11, s11, s12
                s_add_u32 s11, s11, {YTW}
                v_cndmask_b32 v19, v19, v18, vcc""")
            for n in range(3):
                a(f"s_add_u32 m0, s76, {YT+1024*n}\n" + ("s_mov_b32 exec_hi, 0" if n == 2 else "s_nop 0"))
                a.vmem(f"buffer_load_dwordx4 v{18 if n<2 else 19}, s[{rWS}:{rWS+3}], s11 offen sc1 lds", "y")
                if n < 2: a(f"s_add_u32 s11, s11, {8*4096}")
            a("s_mov_b32 exec_hi, -1")
    stamp(5)
    a("s_nop 7")
    for m in range(1, 4):
        for nt in range(5):
            c = AC2 + (m*5+nt)*4
            a(f"ds_write_b128 v{vRW[m-1]}, v[{c}:{c+3}] offset:{nt*1024}")
    a(f"""s_mul_i32 s11, s{sWAVE}, 15360
        v_add_u32 v18, s11, v{vL}
        v_lshrrev_b32 v19, 2, v1
        v_lshlrev_b32 v19, 7, v19
        v_and_b32 v20, 3, v1
        v_lshl_add_u32 v19, v20, 3, v19
        s_lshl_b32 s11, s{sWAVE}, 5
        s_add_u32 s11, s11, {YT}
        v_add_u32 v19, s11, v19
        v_and_b32 v20, 15, v1
        v_mul_u32_u24 v20, 160, v20
        v_lshrrev_b32 v21, 4, v1
        v_lshl_add_u32 v20, v21, 3, v20
        s_add_u32 s11, s76, {QT}
        v_add_u32 v20, s11, v20
        s_add_u32 s11, s76, {OT}
        v_add_u32 v21, s11, v{vL}
        s_waitcnt vmcnt(0) lgkmcnt(0)
        s_barrier""")
    P=32; Y=96; Q=106; TT=116
    for sl in range(3):
        for nt in range(5):
            r = P + (sl*5+nt)*4
            a(f"ds_read_b128 v[{r}:{r+3}], v18 offset:{RED+(sl*5+nt)*1024}")
    a("s_waitcnt lgkmcnt(5)")
    for nt in range(5): a(f"ds_read_b64_tr_b16 v[{Y+2*nt}:{Y+2*nt+1}], v19 offset:{nt*2048}")
    for nt in range(5): a(f"ds_read_b64 v[{Q+2*nt}:{Q+2*nt+1}], v20 offset:{nt*32}")
    a(f"v_lshlrev_b32 v22, 16, v{vGt}\nv_mov_b32 v23, v22\nv_and_b32 v24, 0xffff0000, v{vGt}\nv_mov_b32 v25, v24")
    a("s_waitcnt lgkmcnt(10)")
    for nt in range(5):
        c = AC2 + nt*4
        for sl in range(3):
            r = P + (sl*5+nt)*4
            a(f"v_pk_add_f32 v[{c}:{c+1}], v[{c}:{c+1}], v[{r}:{r+1}]\nv_pk_add_f32 v[{c+2}:{c+3}], v[{c+2}:{c+3}], v[{r+2}:{r+3}]")
    a("s_waitcnt lgkmcnt(0)")
    def rnd2(x):
        a(f"v_cvt_pk_bf16_f32 v{TT+8}, v{x}, v{x+1}"); unpack(x, x+1, TT+8)
    for nt in range(5):
        c = AC2 + nt*4
        for h in range(2):
            x = c + 2*h
            unpack(TT, TT+1, Y+2*nt+h); unpack(TT+2, TT+3, Q+2*nt+h)
            a(f"v_pk_mul_f32 v[{TT}:{TT+1}], v[{TT}:{TT+1}], v[{TT+2}:{TT+3}]")
            if cfg.mimic_o: rnd2(TT); rnd2(x)
            a(f"v_pk_mul_f32 v[{TT}:{TT+1}], v[{TT}:{TT+1}], v[22:23]")
            if cfg.mimic_o:
                a(f"v_pk_mul_f32 v[{x}:{x+1}], v[{x}:{x+1}], v[24:25]")
                rnd2(TT); rnd2(x)
                a(f"v_pk_add_f32 v[{x}:{x+1}], v[{x}:{x+1}], v[{TT}:{TT+1}]")
            else:
                a(f"v_pk_fma_f32 v[{x}:{x+1}], v[{x}:{x+1}], v[24:25], v[{TT}:{TT+1}]")
            a(f"v_cvt_pk_bf16_f32 v{TT+4+h}, v{x}, v{x+1}")
        a(f"ds_write_b64 v20, v[{TT+4}:{TT+5}] offset:{OT-QT+nt*32}")
    srd(rM1, pOUT, 2621440)
    a("s_waitcnt lgkmcnt(0)")
    for n in range(3): a(f"ds_read_b128 v[{P+4*n}:{P+4*n+3}], v21 offset:{1024*n}")
    for n in range(3):
        a(f"s_waitcnt lgkmcnt({2-n})\nbuffer_store_dwordx4 v[{P+4*n}:{P+4*n+3}], v{vG3[n]}, s[{rM1}:{rM1+3}], s{sRC} offen")
    stamp(6)
    stamp_store(7, 26)
    a(f"s_or_b32 s11, s2, s{sWAVE}\ns_cmp_lg_u32 s11, 0\ns_cbranch_scc1 L_end")
    srd(rM3, pDBG, 256)
    a(f"v_mov_b32 v19, 0\ns_mov_b32 s12, {cfg.spin_max}")
    a.label("L_ep")
    a(f"""buffer_load_dword v18, v19, s[{rM3}:{rM3+3}], 0 offen sc1
        s_waitcnt vmcnt(0)
        v_cmp_ne_u32 vcc, 0x100, v18
        s_sub_u32 s12, s12, 1
        s_cselect_b64 vcc, 0, vcc
        s_cmp_eq_u64 vcc, 0
        s_cbranch_scc0 L_ep
        v_mov_b32 v18, s{sTAG}
        s_mov_b64 exec, 1
        buffer_store_dword v18, v19, s[{rWS}:{rWS+3}], 0 offen sc1""")
    a.label("L_end")
    a("s_endpgm")
    a.label("L_code_end")
    body = a.text()
    ref = open(f"cdna_kernels/{NAME}.s.ref").read()
    head = [l for l in ref.split("\n") if l.startswith(";") and "@launch" not in l]
    out = "\n".join(head) + f"\n; @launch grid=(256,1,1) block=(512,1,1) lds={LDS_BYTES}\n"
    out += f""".amdgcn_target "amdgcn-amd-amdhsa--gfx950"
.text
.globl {NAME}_kernel
.p2align 8
.type {NAME}_kernel,@function
{NAME}_kernel:
{body}.section .rodata,"a"
.p2align 6
.amdhsa_kernel {NAME}_kernel
  .amdhsa_next_free_vgpr 256
  .amdhsa_next_free_sgpr 102
  .amdhsa_accum_offset 256
  .amdhsa_group_segment_fixed_size 0
  .amdhsa_kernarg_size 112
  .amdhsa_user_sgpr_count 2
  .amdhsa_user_sgpr_kernarg_segment_ptr 1
  .amdhsa_system_sgpr_workgroup_id_x 1
.end_amdhsa_kernel
"""
    return out, body

if __name__ == "__main__":
    outp = sys.argv[1] if len(sys.argv) > 1 else "k.s"
    for kv in sys.argv[2:]:
        k, v = kv.split("="); setattr(cfg, k, eval(v))
    out, body = gen(cfg)
    errs = check_hazards(body)
    for e in errs: print("HAZARD", e)
    open(outp, "w").write(out)
    print("wrote", outp, len(out), "bytes;", len(errs), "hazards")
```

```python
import sys
from asmlib import *
NAME = "gated_mix__ssm_conv_h3__glu_gated_glu__prompt"
EPOCH=0; S1FLAG=0x1000; HFLAG=0x2000; YFLAG=0x4000; GATE=0x8000; STAMP=0x10000
KVR=0x100000; WDT=0x400000; HT=0x600000; YTW=0xC00000; WS_SIZE=0x1000000
OOB = 0x80000000

class Cfg:
    mimic_h = True
    mimic_o = True
    stamps = False
    spin_max = 1 << 16
    rot = False
    gtouch = True
    nopk = True
    side_t = 3
    la = 3
    thot = 6
    tflag = 13
    tpoll = 16
    tconv = 17
    ystep = 8
    wtouch = True
    touch = True
    tnt = 'nt'
    dnt = 'nt'
    snt = 'nt'
    prio = True
cfg = Cfg()

def gen(cfg):
    R = 6; WSL = 12288; XB = R*WSL; XSL = 16384; NX = 4
    CB = XB + 3*XSL
    HE=0; HO=4160; XR=8320; CSZ=12928
    T1 = XB + 4*XSL; PT = T1 + 11520; DUMMY = PT + 8192
    LDS_BYTES = CB + 3*CSZ + 128
    assert LDS_BYTES <= 163840 and DUMMY + 600 <= LDS_BYTES
    LFLAG = LDS_BYTES - 16
    PRIV = 25600; QT = 102400; YT = 112640; OTO = 15360
    a = Asm()
    NST = 20
    sWAVE=3; sX=4; sJ=5; sRB128=6; sFB=7; sRB64=8; sCB=9; sTAG=10
    pQ,pK,pV,pSH,pSK,pSD,pBX,pWG,pWU,pWD,pGW,pOUT,pDBG,pWS = [16+2*i for i in range(14)]
    rWS=44; rX=48; rW=52; rM1=56; rM2=60; rM3=64; rSK=84
    def srd(r, p, size):
        a(f"s_mov_b64 s[{r}:{r+1}], s[{p}:{p+1}]\ns_mov_b32 s{r+2}, {size}\ns_mov_b32 s{r+3}, 0x20000")
    def stamp(k, sreg=None):
        if cfg.stamps:
            a(f"s_memtime s[80:81]\ns_waitcnt lgkmcnt(0)\nv_writelane_b32 v3, s80, {k if sreg is None else 'm0'}")
    def rstamp(k):
        if cfg.stamps:
            a(f"s_memrealtime s[80:81]\ns_waitcnt lgkmcnt(0)\nv_writelane_b32 v3, s80, {k}")
    def stamp_store(vtmp):
        if not cfg.stamps: return
        a(f"s_lshl_b32 s11, s2, 3\ns_add_u32 s11, s11, s{sWAVE}\ns_lshl_b32 s11, s11, 8\ns_add_u32 s11, s11, {STAMP}")
        a(f"v_lshlrev_b32 v{vtmp}, 2, v1\nbuffer_store_dword v3, v{vtmp}, s[{rWS}:{rWS+3}], s11 offen\ns_waitcnt vmcnt(0)")
    lab = [0]
    def spin(voff, soff, vtmp, first_wait=None):
        lab[0] += 1; L = f"L_spin{lab[0]}"
        a(f"s_mov_b32 s12, {cfg.spin_max}")
        if first_wait is not None:
            first_wait()
            a(f"s_branch {L}_chk")
        a.label(L)
        a(f"buffer_load_dword v{vtmp}, v{voff}, s[{rWS}:{rWS+3}], s{soff} offen sc1")
        a(f"s_waitcnt vmcnt(0)")
        a.label(L + "_chk")
        a(f"""v_cmp_ne_u32 vcc, s{sTAG}, v{vtmp}
            s_sub_u32 s12, s12, 1
            s_cselect_b64 vcc, 0, vcc
            s_cmp_eq_u64 vcc, 0
            s_cbranch_scc0 {L}""")
    def unpack(dlo, dhi, src):
        a(f"v_lshlrev_b32 v{dlo}, 16, v{src}\nv_and_b32 v{dhi}, 0xffff0000, v{src}")
    def seq(*fs):
        def g():
            for f in fs: f()
        return g
    def wait_tag(tag): return lambda: a.vm_wait(tag)
    def mk_tag(): a(f"s_waitcnt lgkmcnt(0)\ns_mul_i32 s{sTAG}, s{sTAG}, 0x9E3779B1\ns_add_u32 s{sTAG}, s{sTAG}, 0x7F4A7C15")

    a("s_cmp_ge_u32 s2, 256\ns_cbranch_scc1 L_end")
    stamp(0)
    rstamp(60)
    a("s_load_dwordx16 s[16:31], s[0:1], 0\ns_load_dwordx8 s[32:39], s[0:1], 64\ns_load_dwordx4 s[40:43], s[0:1], 96")
    a("v_lshrrev_b32 v2, 6, v0\nv_and_b32 v1, 63, v0")
    a("s_getpc_b64 s[14:15]")
    a.label("L_pc")
    a("v_lshlrev_b32 v4, 7, v0\nv_min_u32 v4, L_code_end-L_pc-4, v4")
    a(f"v_readfirstlane_b32 s{sWAVE}, v2")
    a("v_cmp_gt_u32 vcc, (L_code_end-L_pc+127)/128, v0\ns_and_saveexec_b64 s[12:13], vcc\ns_cbranch_execz L_nopf")
    a("global_load_dword v47, v4, s[14:15]")
    a.label("L_nopf")
    a("s_mov_b64 exec, -1")
    a(f"""s_and_b32 s{sX}, s2, 7
        s_lshr_b32 s{sJ}, s2, 3
        s_and_b32 s11, s{sX}, 1
        s_lshr_b32 s12, s{sX}, 1
        s_and_b32 s13, s{sJ}, 7
        s_lshl3_add_u32 s{sRB128}, s11, s13
        s_lshr_b32 s13, s{sJ}, 3
        s_lshl2_add_u32 s{sFB}, s12, s13
        s_and_b32 s13, s{sJ}, 3
        s_lshl2_add_u32 s{sCB}, s11, s13
        s_lshr_b32 s13, s{sJ}, 2
        s_lshl3_add_u32 s{sRB64}, s12, s13
        s_cmp_lt_u32 s{sWAVE}, 4
        s_cbranch_scc1 L_comp""")

    sA=68; sLW=69; sLX=70; sOW=71; sOX=72; sOX2=73; sKT=79
    vW0,vW1,vW2,vXe,vXo = 4,5,6,7,2
    a(f"s_sub_u32 s{sA}, s{sWAVE}, 4")
    a("s_mov_b32 s11, 43691\ns_movk_i32 s12, 3072")
    for i, v in enumerate((vW0,vW1,vW2)):
        a(f"""v_add_u32 v8, {64*i}, v1
            v_mul_u32_u24 v9, s11, v8
            v_lshrrev_b32 v9, 19, v9
            v_mul_u32_u24 v10, 12, v9
            v_sub_u32 v8, v8, v10
            v_lshlrev_b32 v8, 4, v8
            v_mad_u32_u24 v{v}, v9, s12, v8""")
        if i: a(f"v_subrev_u32 v{v}, {1024*i}, v{v}")
    a(f"""v_lshrrev_b32 v8, 3, v1
        v_mul_u32_u24 v8, 1280, v8
        v_lshrrev_b32 v9, 4, v1
        v_xor_b32 v9, v9, v1
        v_and_b32 v9, 7, v9
        v_lshl_add_u32 v{vXe}, v9, 4, v8
        v_xor_b32 v9, 4, v9
        v_lshl_add_u32 v{vXo}, v9, 4, v8
        v_add_u32 v{vXo}, {10240-1024}, v{vXo}
        s_and_b32 s11, s{sA}, 1
        s_lshr_b32 s12, s{sA}, 1
        s_mul_i32 s{sLW}, s12, 6144
        s_mul_i32 s13, s11, 3072
        s_add_u32 s{sLW}, s{sLW}, s13
        s_lshl_b32 s{sLX}, s{sA}, 12
        s_add_u32 s{sLX}, s{sLX}, {XB}
        s_mul_i32 s{sOW}, s{sFB}, 192
        s_mul_i32 s13, s11, 49152
        s_add_u32 s{sOW}, s{sOW}, s13
        s_lshl2_add_u32 s13, s{sRB128}, s{sA}
        s_mul_i32 s{sOX}, s13, 40960""")
    if cfg.rot:
        a(f"""s_lshr_b32 s11, s{sJ}, 3
            s_mul_i32 s11, s11, 10
            s_and_b32 s12, s{sJ}, 7
            s_mul_i32 s12, s12, 5
            s_add_u32 s11, s11, s12
            s_lshr_b32 s{sKT}, s11, 1
            s_cmp_ge_u32 s{sKT}, 20
            s_cselect_b32 s11, 20, 0
            s_sub_u32 s{sKT}, s{sKT}, s11
            s_and_b32 s{sKT}, s{sKT}, 0xfe
            s_mul_i32 s11, s{sKT}, 98304
            s_add_u32 s{sOW}, s{sOW}, s11
            s_lshl_b32 s11, s{sKT}, 6
            s_add_u32 s{sOX}, s{sOX}, s11""")
    a(f"s_add_u32 s{sOX2}, s{sOX}, {20480-2048}")
    a("s_waitcnt lgkmcnt(0)")
    stamp(8)
    a(f"s_load_dword s{sTAG}, s[{pWS}:{pWS+1}], {EPOCH}")
    a(f"s_cmp_lt_u32 s{sA}, 2\ns_cselect_b64 s[{rW}:{rW+1}], s[{pWG}:{pWG+1}], s[{pWU}:{pWU+1}]\ns_mov_b32 s{rW+2}, 1966080\ns_mov_b32 s{rW+3}, 0x20000")
    srd(rX, pQ, 2621440)
    def dma_stage(t):
        if t % 2 == 0:
            a(f"s_add_u32 m0, s{sLX}, {((t//2) % NX)*XSL}\ns_nop 0")
            a.vmem(f"buffer_load_dwordx4 v{vXe}, s[{rX}:{rX+3}], s{sOX} offen {cfg.dnt} lds", f"dma{t}")
            a.vmem(f"buffer_load_dwordx4 v{vXo}, s[{rX}:{rX+3}], s{sOX} offen offset:1024 {cfg.dnt} lds", f"dma{t}")
            a.vmem(f"buffer_load_dwordx4 v{vXe}, s[{rX}:{rX+3}], s{sOX2} offen offset:2048 {cfg.dnt} lds", f"dma{t}")
            a.vmem(f"buffer_load_dwordx4 v{vXo}, s[{rX}:{rX+3}], s{sOX2} offen offset:3072 {cfg.dnt} lds", f"dma{t}")
        a(f"s_add_u32 m0, s{sLW}, {(t % R)*WSL}\ns_nop 0")
        for i, v in enumerate((vW0,vW1,vW2)):
            a.vmem(f"buffer_load_dwordx4 v{v}, s[{rW}:{rW+3}], s{sOW} offen offset:{1024*i} {cfg.dnt} lds", f"dma{t}")
        a(f"s_add_u32 s{sOW}, s{sOW}, 98304")
        if t % 2 == 1:
            a(f"s_add_u32 s{sOX}, s{sOX}, 128")
            if cfg.rot:
                a(f"""s_add_u32 s{sKT}, s{sKT}, 2
                    s_cmp_eq_u32 s{sKT}, 20
                    s_cselect_b32 s11, {20*98304}, 0
                    s_cselect_b32 s12, 1280, 0
                    s_sub_u32 s{sOW}, s{sOW}, s11
                    s_sub_u32 s{sOX}, s{sOX}, s12""")
            a(f"s_add_u32 s{sOX2}, s{sOX}, {20480-2048}")
    a.vm_reset()
    dma_stage(0); dma_stage(1)
    rG = 96; sGo = 95; vGo = 140
    def gtouch_setup():
        a(f"""s_bitcmp1_b32 s{sA}, 0
            s_cbranch_scc1 L_gt_x
            v_mul_u32_u24 v141, 43691, v1
            v_lshrrev_b32 v141, 19, v141
            v_mul_u32_u24 v142, 12, v141
            v_sub_u32 v142, v1, v142
            v_cmp_lt_u32 vcc, 5, v142
            v_lshlrev_b32 v141, 6, v141
            v_subrev_u32 v143, 6, v142
            v_addc_co_u32 v141, s[12:13], 0, v141, vcc
            v_cndmask_b32 v142, v142, v143, vcc
            v_mul_u32_u24 v141, 3072, v141
            v_lshl_add_u32 v{vGo}, v142, 7, v141
            v_cmp_gt_u32 vcc, 48, v1
            v_mov_b32 v141, {OOB}
            s_lshr_b32 s11, s{sX}, 1
            s_mul_i32 s11, s11, 768
            s_mul_i32 s{sGo}, s{sJ}, 6144
            s_add_u32 s{sGo}, s{sGo}, s11
            s_add_u32 s{sGo}, s{sGo}, {128*3072}
            v_cndmask_b32 v{vGo}, v141, v{vGo}, vcc
            s_mov_b64 s[{rG}:{rG+1}], s[{rW}:{rW+1}]
            s_mov_b32 s{rG+2}, 1966080
            s_mov_b32 s100, {256*3072}
            s_branch L_gt_done""")
        a.label("L_gt_x")
        a(f"""v_and_b32 v141, 31, v1
            v_mul_u32_u24 v141, 1280, v141
            v_lshrrev_b32 v142, 5, v1
            v_lshl_add_u32 v{vGo}, v142, 7, v141
            s_and_b32 s11, s{sX}, 1
            s_lshl_b32 s11, s11, 5
            s_add_u32 s11, s11, s{sJ}
            s_mul_i32 s{sGo}, s11, 40960
            s_lshr_b32 s11, s{sA}, 1
            s_lshl_b32 s11, s11, 8
            s_add_u32 s{sGo}, s{sGo}, s11
            s_add_u32 s{sGo}, s{sGo}, 256
            s_mov_b64 s[{rG}:{rG+1}], s[{rX}:{rX+1}]
            s_mov_b32 s{rG+2}, 2621440
            s_mov_b32 s100, 512""")
        a.label("L_gt_done")
        a(f"s_mov_b32 s{rG+3}, 0x20000")
    def gtouch(i):
        def f():
            if not cfg.gtouch: return
            a.vmem(f"buffer_load_dword v{144+i}, v{vGo}, s[{rG}:{rG+3}], s{sGo} offen {cfg.tnt}", "touch")
            a.vmem(f"buffer_load_dword v{146+i}, v{vGo}, s[{rG}:{rG+3}], s{sGo} offen offset:64 {cfg.tnt}", "touch")
            a(f"s_add_u32 s{sGo}, s{sGo}, s100")
        return f
    if cfg.gtouch: gtouch_setup(); gtouch(0)()
    srd(rWS, pWS, WS_SIZE)
    vm_common = list(a.vm)
    a(f"s_cmp_eq_u32 s{sWAVE}, 7\ns_cbranch_scc1 L_svc")

    def aux_loop(side_loads, side, pre):
        dma_stage(2); dma_stage(3)
        if -2 in side: side[-2]()
        if cfg.prio: a("s_setprio 2")
        mk_tag()
        stamp(9)
        a.vm_wait("dma0"); stamp(10); a("s_barrier")
        nxt = 4
        if -1 in side: side[-1]()
        for t in range(NST):
            if t+1 < NST: a.vm_wait(f"dma{t+1}")
            if t in pre: pre[t]()
            stamp(16+t)
            a("s_barrier")
            stamp(40+t)
            if t % 2 == 0:
                while nxt <= t + 5 and nxt < NST: dma_stage(nxt); nxt += 1
            if t == 0: gtouch(1)()
            if t == cfg.side_t: side_loads()
            if t in side: side[t]()

    vK=16; vV=38; vSw=54; vWp=64; vKf=80; vVf=104; vKV=106; vPk=122
    vKh,vK0,vK1,vSh,vT1 = 8,9,10,11,12
    def s1_loads():
        srd(rM1, pK, 2621440); srd(rM2, pV, 2621440); srd(rM3, pSH, 5120)
        a(f"""s_lshl_b32 s11, s{sA}, 6
            v_add_u32 v13, s11, v1
            v_mul_u32_u24 v14, 3277, v13
            v_lshrrev_b32 v14, 16, v14
            v_mul_u32_u24 v15, 20, v14
            v_sub_u32 v15, v13, v15
            s_mul_i32 s11, s{sRB64}, 81920
            s_mul_i32 s12, s{sCB}, 160
            s_add_u32 s11, s11, s12
            v_mul_u32_u24 v{vK0}, 10240, v14
            v_lshl_add_u32 v{vK0}, v15, 3, v{vK0}
            v_add_u32 v{vK0}, s11, v{vK0}
            s_lshl_b32 s12, s12, 2
            v_lshlrev_b32 v{vSh}, 5, v15
            v_add_u32 v{vSh}, s12, v{vSh}
            v_mul_u32_u24 v{vT1}, 576, v15
            v_lshlrev_b32 v14, 4, v14
            v_sub_u32 v{vT1}, v{vT1}, v14
            v_add_u32 v{vT1}, {T1+112}, v{vT1}
            v_cmp_gt_u32 vcc, 160, v13
            v_mov_b32 v14, {OOB}
            v_mov_b32 v15, {DUMMY}
            v_cndmask_b32 v{vK0}, v14, v{vK0}, vcc
            v_cndmask_b32 v{vT1}, v15, v{vT1}, vcc
            v_subrev_u32 v{vKh}, 3840, v{vK0}
            v_add_u32 v{vK1}, 5120, v{vK0}""")
        for r in range(11):
            base, off = (vKh, r*1280) if r < 3 else ((vK0, (r-3)*1280) if r < 7 else (vK1, (r-7)*1280))
            a.vmem(f"buffer_load_dwordx2 v[{vK+2*r}:{vK+2*r+1}], v{base}, s[{rM1}:{rM1+3}], 0 offen offset:{off} {cfg.snt}", "side")
        for r in range(8):
            base, off = (vK0, r*1280) if r < 4 else (vK1, (r-4)*1280)
            a.vmem(f"buffer_load_dwordx2 v[{vV+2*r}:{vV+2*r+1}], v{base}, s[{rM2}:{rM2+3}], 0 offen offset:{off} {cfg.snt}", "side")
        a.vmem(f"buffer_load_dwordx4 v[{vSw}:{vSw+3}], v{vSh}, s[{rM3}:{rM3+3}], 0 offen", "side")
        a.vmem(f"buffer_load_dwordx4 v[{vSw+4}:{vSw+7}], v{vSh}, s[{rM3}:{rM3+3}], 0 offen offset:16", "side")
    def s1_chunk(p, half):
        def f():
            if half == 0:
                for cc in range(2):
                    c = 2*p+cc
                    unpack(vWp+0+cc, vWp+2+cc, vSw+2*c)
                    unpack(vWp+4+cc, vWp+6+cc, vSw+2*c+1)
                for r in range(11): unpack(vKf+2*r, vKf+2*r+1, vK+2*r+p)
                rows = range(0, 1)
            elif half == 1:
                rows = range(1, 5)
            else:
                rows = range(5, 8)
            for r in rows:
                A = vKV+2*r
                unpack(vVf, vVf+1, vV+2*r+p)
                for c in range(2): a(f"v_mul_f32 v{A+c}, v{vKf+2*r+c}, v{vWp+6+c}")
                for jj in (2,1,0):
                    kr = vKf+2*(r+3-jj)
                    for c in range(2): a(f"v_fmac_f32 v{A+c}, v{kr+c}, v{vWp+2*jj+c}")
                for c in range(2): a(f"v_mul_f32 v{A+c}, v{A+c}, v{vVf+c}")
            if half == 2:
                for cc in range(2):
                    for m in range(4):
                        a(f"v_cvt_pk_bf16_f32 v{vPk+4*cc+m}, v{vKV+2*(7-2*m)+cc}, v{vKV+2*(6-2*m)+cc}")
                    a(f"ds_write_b128 v{vT1}, v[{vPk+4*cc}:{vPk+4*cc+3}] offset:{(2*p+cc)*144}")
                if p == 1: a("s_waitcnt lgkmcnt(0)")
        return f
    def s1_store():
        a(f"""s_lshl_b32 s11, s{sA}, 6
            v_add_u32 v13, s11, v1
            v_lshrrev_b32 v14, 3, v13
            v_and_b32 v15, 7, v13
            v_lshlrev_b32 v15, 4, v15
            v_mul_u32_u24 v8, 144, v14
            s_mov_b32 s12, {T1}
            v_add3_u32 v8, v8, v15, s12
            v_lshl_add_u32 v9, v14, 12, v15
            s_mul_i32 s11, s{sCB}, {80*4096}
            s_lshl_b32 s12, s{sRB64}, 7
            s_sub_u32 s11, s11, s12
            s_add_u32 s11, s11, {KVR+1984*2}
            v_cmp_gt_u32 vcc, 64, v13
            v_mov_b32 v14, {OOB}""")
        for i in range(4):
            a(f"ds_read_b128 v[{vK+4*i}:{vK+4*i+3}], v8 offset:{i*24*144}")
        a("v_cndmask_b32 v10, v14, v9, vcc")
        for i in range(4):
            a(f"s_waitcnt lgkmcnt({3-i})")
            a.vmem(f"buffer_store_dwordx4 v[{vK+4*i}:{vK+4*i+3}], v{9 if i<3 else 10}, s[{rWS}:{rWS+3}], s11 offen sc1", "kvr")
            if i < 3: a(f"s_add_u32 s11, s11, {24*4096}")
    sD=74; sCR=75; sDv=76; sVal=77
    rT = 88
    def touch_a():
        if not cfg.touch: return
        a(f"""s_cmp_eq_u32 s{sA}, 0
            s_cselect_b64 s[{rT}:{rT+1}], s[{pK}:{pK+1}], s[{pV}:{pV+1}]
            s_mul_i32 s92, s{sRB64}, 81920
            s_mov_b32 s{rT+2}, 2621440
            s_mul_i32 s11, s{sRB64}, {48*1280}
            s_cmp_eq_u32 s{sA}, 2
            s_cselect_b64 s[{rT}:{rT+1}], s[{pWD}:{pWD+1}], s[{rT}:{rT+1}]
            s_cselect_b32 s{rT+2}, 1966080, s{rT+2}
            s_cselect_b32 s92, s11, s92
            s_cselect_b32 s12, 0xffff, -1
            s_mov_b32 s{rT+3}, 0x20000
            s_mul_i32 s11, s{sCB}, 160
            s_add_u32 s92, s92, s11
            v_mul_u32_u24 v131, 1280, v1
            s_mov_b32 exec_hi, s12""")
        a.vmem(f"buffer_load_dword v132, v131, s[{rT}:{rT+3}], s92 offen {cfg.tnt}", "touch")
        a("s_mov_b32 s93, s12\ns_mov_b32 exec_hi, -1")
    def touch_b():
        if not cfg.touch: return
        a("s_mov_b32 exec_hi, s93")
        a.vmem(f"buffer_load_dword v133, v131, s[{rT}:{rT+3}], s92 offen offset:64 {cfg.tnt}", "touch")
        a.vmem(f"buffer_load_dword v134, v131, s[{rT}:{rT+3}], s92 offen offset:128 {cfg.tnt}", "touch")
        a("s_mov_b32 exec_hi, -1")
    def conv_ids():
        a(f"""s_cmp_lt_u32 s{sRB64}, 16
            s_cselect_b32 s11, 3, 2
            s_cselect_b32 s12, 0, 16
            s_cmp_lt_u32 s{sA}, s11
            s_cselect_b32 s{sVal}, 1, 0
            s_cselect_b32 s14, s{sA}, 0
            s_mul_i32 s13, s{sRB64}, s11
            s_add_u32 s13, s13, s12
            s_mul_i32 s{sD}, s{sCB}, 80
            s_add_u32 s{sD}, s{sD}, s13
            s_add_u32 s{sD}, s{sD}, s14
            s_mul_i32 s{sCR}, s{sA}, {CSZ}
            s_add_u32 s{sCR}, s{sCR}, {CB}
            s_lshl_b32 s11, s{sD}, 1
            s_and_b32 s11, s11, 0xfffffffc
            s_load_dword s{sDv}, s[{pSD}:{pSD+1}], s11""")
        srd(rSK, pSK, 2621440)
        a(f"""v_lshlrev_b32 v14, 6, v1
            s_lshl_b32 s13, s{sD}, 12""")
        a.vmem(f"buffer_load_dword v130, v14, s[{rSK}:{rSK+3}], s13 offen {cfg.tnt}", "touch")
    def conv_pre():
        a(f"""s_cmp_eq_u32 s{sVal}, 0
            s_cselect_b32 s12, {OOB}, 0
            v_lshlrev_b32 v8, 4, v1
            v_add_u32 v8, s12, v8
            v_add_u32 v9, 2, v8
            s_lshl_b32 s13, s{sD}, 12
            s_add_u32 m0, s{sCR}, {HE+32}
            v_mov_b32 v12, 0
            v_mov_b32 v13, 0""")
        for i in range(4): a.vmem(f"buffer_load_dwordx4 v8, s[{rSK}:{rSK+3}], s13 offen offset:{1024*i} lds", "he")
        a(f"s_add_u32 m0, s{sCR}, {HO+32}\ns_nop 0")
        for i in range(4): a.vmem(f"buffer_load_dwordx4 v9, s[{rSK}:{rSK+3}], s13 offen offset:{1024*i} lds", "he")
        a(f"""v_lshlrev_b32 v10, 3, v1
            v_add_u32 v10, s{sCR}, v10
            ds_write_b64 v10, v[12:13] offset:{XR+4096}
            v_and_b32 v11, 3, v1
            v_lshlrev_b32 v11, 3, v11
            v_add_u32 v11, s{sCR}, v11
            ds_write_b64 v11, v[12:13] offset:{HE}
            ds_write_b64 v11, v[12:13] offset:{HO}""")
    def lds_flag_read(vt, sdst):
        a(f"""v_mov_b32 v{vt}, {LFLAG}
            ds_read_b32 v{vt}, v{vt}
            s_waitcnt lgkmcnt(0)
            v_readfirstlane_b32 s{sdst}, v{vt}""")
    def lds_flag_spin(vt):
        lab[0] += 1; L = f"L_lf{lab[0]}"
        a(f"s_mov_b32 s12, {cfg.spin_max*16}")
        a.label(L)
        lds_flag_read(vt, 11)
        a(f"""s_sub_u32 s12, s12, 1
            s_cselect_b32 s11, 1, s11
            s_cmp_eq_u32 s11, 0
            s_cbranch_scc1 {L}""")
    def xr_issue():
        a(f"""s_lshl_b32 s13, s{sD}, 12
            s_add_u32 s13, s13, {KVR}
            s_add_u32 m0, s{sCR}, {XR}
            s_nop 0""")
        for i in range(4): a(f"buffer_load_dwordx4 v8, s[{rWS}:{rWS+3}], s13 offen offset:{1024*i} sc1 lds")
    def conv_xr():
        lds_flag_read(10, 94)
        a("s_cmp_eq_u32 s94, 0\ns_cbranch_scc1 L_xr_skip")
        xr_issue()
        a.label("L_xr_skip")
    vA=[16,17,18,19]; vB=20; vE=21
    cAcc=32; cS=[64,128]
    def conv_addr():
        a(f"""v_and_b32 v10, 15, v1
            v_lshrrev_b32 v11, 4, v1
            v_and_b32 v12, 1, v1
            v_lshlrev_b32 v13, 1, v10
            v_lshl_add_u32 v13, v11, 4, v13
            v_cmp_eq_u32 vcc, 1, v12
            v_mov_b32 v14, {HO+32-32}
            v_mov_b32 v15, {HE+32-30}
            v_cndmask_b32 v14, v14, v15, vcc
            v_add3_u32 v{vA[0]}, v13, v14, s{sCR}
            v_add_u32 v{vA[1]}, 1024, v{vA[0]}
            v_add_u32 v{vA[2]}, 2048, v{vA[0]}
            v_add_u32 v{vA[3]}, 3072, v{vA[0]}
            v_lshlrev_b32 v13, 5, v10
            v_lshlrev_b32 v14, 4, v11
            v_sub_u32 v14, v14, v13
            v_add_u32 v14, {XR+4064-3584}, v14
            v_add_u32 v{vB}, s{sCR}, v14
            v_lshlrev_b32 v14, 3, v11
            v_add_u32 v14, v14, v13
            v_sub_u32 v{vE}, {XR+4088-3584}, v14
            v_add_u32 v{vE}, s{sCR}, v{vE}""")
        for i in range(32): a(f"v_mov_b32 v{cAcc+i}, 0")
    tc = cfg.side_t + 2
    tchk = NST-2
    tx = NST-2
    sideA = {tc: seq(wait_tag('side'), s1_chunk(0,0)), tc+1: s1_chunk(0,1), tc+2: s1_chunk(0,2), tc+3: s1_chunk(1,0), tc+4: s1_chunk(1,1), tc+5: s1_chunk(1,2), tc+6: s1_store}
    def add(d, t, f): d[t] = seq(d[t], f) if t in d else f
    add(sideA, cfg.tconv, conv_pre); add(sideA, tx, conv_xr); add(sideA, cfg.tconv-1, conv_addr)
    assert cfg.tflag > tc+6 and cfg.tconv >= 15 and cfg.tpoll > cfg.tflag and tx < NST
    add(sideA, -2, seq(touch_a, touch_b)); add(sideA, 2, conv_ids)
    aux_loop(s1_loads, sideA, {cfg.tflag: wait_tag('kvr')})
    stamp(1)
    a(f"s_cmp_eq_u32 s{sVal}, 0\ns_cbranch_scc1 L_end")
    if cfg.prio: a("s_setprio 0")
    a("s_cmp_lg_u32 s94, 0\ns_cbranch_scc1 L_xr_done")
    lds_flag_spin(10)
    xr_issue()
    a.label("L_xr_done")
    a(f"""s_waitcnt vmcnt(0)
        v_mov_b32 v10, s{sCR}
        ds_read_b32 v11, v10 offset:{HE+32}
        s_waitcnt lgkmcnt(0)
        v_lshlrev_b32 v11, 16, v11
        ds_write_b32 v10, v11 offset:{HO+28}""")
    def conv_reads(st, cp):
        base = cS[st]; out = []
        def rdA(C):
            o = (C&1)*128 + cp*16
            r = base+4*C
            return [f"ds_read2_b32 v[{r}:{r+1}], v{vA[C>>1]} offset0:{o} offset1:{o+1}",
                    f"ds_read2_b32 v[{r+2}:{r+3}], v{vA[C>>1]} offset0:{o+2} offset1:{o+3}"]
        def rdB(U):
            r = base+32+4*U
            return [f"ds_read_b128 v[{r}:{r+3}], v{vB} offset:{(7-U)*512+cp*64}"]
        out += rdA(0)
        for U in range(8): out += rdB(U)
        for C in range(1,8): out += rdA(C)
        return out
    def conv_mfmas(st):
        base = cS[st]; out = []
        for C in range(8):
            for J in range(C, 8):
                U = J-C
                out.append(f"v_mfma_f32_16x16x32_bf16 v[{cAcc+4*J}:{cAcc+4*J+3}], v[{base+4*C}:{base+4*C+3}], v[{base+32+4*U}:{base+32+4*U+3}], v[{cAcc+4*J}:{cAcc+4*J+3}]")
        return out
    stamp(2)
    for l in conv_reads(0, 0): a(l)
    a("s_mov_b32 s11, 4")
    a.label("L_conv")
    for st in range(2):
        a("s_waitcnt lgkmcnt(0)")
        if st == 1:
            for v in vA + [vB]: a(f"v_add_u32 v{v}, 128, v{v}")
        rd = conv_reads(1-st, 1 if st == 0 else 0)
        mf = conv_mfmas(st)
        for i, m in enumerate(mf):
            a(m)
            if i < len(rd): a(rd[i])
    a("s_sub_u32 s11, s11, 1\ns_cmp_lg_u32 s11, 0\ns_cbranch_scc1 L_conv")
    stamp(3)
    a(f"""s_waitcnt lgkmcnt(0)
        s_bitcmp1_b32 s{sD}, 0
        s_cselect_b32 s12, 0, 16
        s_lshl_b32 s{sDv}, s{sDv}, s12
        s_and_b32 s{sDv}, s{sDv}, 0xffff0000""")
    for J in range(8): a(f"ds_read_b64 v[{64+2*J}:{65+2*J}], v{vE} offset:{(7-J)*512}")
    a(f"""v_and_b32 v10, 15, v1
        v_lshrrev_b32 v11, 4, v1
        v_lshlrev_b32 v10, 5, v10
        v_lshl_add_u32 v10, v11, 3, v10
        v_add_u32 v10, s{sCR}, v10
        v_add_u32 v11, s{sCR}, v8
        s_waitcnt lgkmcnt(0)""")
    for J in range(8):
        A = cAcc+4*J; K = 64+2*J; T = 96
        a(f"""v_and_b32 v{T}, 0xffff0000, v{K+1}
            v_lshlrev_b32 v{T+1}, 16, v{K+1}
            v_and_b32 v{T+2}, 0xffff0000, v{K}
            v_lshlrev_b32 v{T+3}, 16, v{K}
            v_mul_f32 v{T}, s{sDv}, v{T}
            v_mul_f32 v{T+1}, s{sDv}, v{T+1}
            v_mul_f32 v{T+2}, s{sDv}, v{T+2}
            v_mul_f32 v{T+3}, s{sDv}, v{T+3}
            v_cvt_pk_bf16_f32 v{T+4}, v{T}, v{T+1}
            v_cvt_pk_bf16_f32 v{T+5}, v{T+2}, v{T+3}
            v_cvt_pk_bf16_f32 v{T+6}, v{A}, v{A+1}
            v_cvt_pk_bf16_f32 v{T+7}, v{A+2}, v{A+3}""")
        unpack(T, T+1, T+4); unpack(T+2, T+3, T+5); unpack(A, A+1, T+6); unpack(A+2, A+3, T+7)
        a(f"""v_add_f32 v{A}, v{A}, v{T}
            v_add_f32 v{A+1}, v{A+1}, v{T+1}
            v_add_f32 v{A+2}, v{A+2}, v{T+2}
            v_add_f32 v{A+3}, v{A+3}, v{T+3}
            v_cvt_pk_bf16_f32 v{K}, v{A}, v{A+1}
            v_cvt_pk_bf16_f32 v{K+1}, v{A+2}, v{A+3}
            ds_write_b64 v10, v[{K}:{K+1}] offset:{512*J}""")
    a("s_waitcnt lgkmcnt(0)")
    for i in range(4): a(f"ds_read_b128 v[{96+4*i}:{99+4*i}], v11 offset:{1024*i}")
    a(f"s_lshl_b32 s13, s{sD}, 12\ns_add_u32 s13, s13, {YTW}")
    stamp(5)
    for i in range(4):
        a(f"s_waitcnt lgkmcnt({3-i})\nbuffer_store_dwordx4 v[{96+4*i}:{99+4*i}], v8, s[{rWS}:{rWS+3}], s13 offen offset:{1024*i} sc1")
    stamp(6)
    a(f"""s_lshl_b32 s13, s{sD}, 2
        s_add_u32 s13, s13, {YFLAG}
        v_mov_b32 v12, s{sTAG}
        v_mov_b32 v13, 0
        s_waitcnt vmcnt(0)
        s_mov_b64 exec, 1
        buffer_store_dword v12, v13, s[{rWS}:{rWS+3}], s13 offen sc1
        s_mov_b64 exec, -1""")
    stamp(4)
    stamp_store(10)
    a("s_endpgm")

    a.label("L_svc")
    a.vm = list(vm_common)
    gX=16; gW=56; pF=100
    def svc_loads():
        srd(rM1, pWD, 1966080); srd(rM2, pGW, 1280)
        a(f"""s_mul_i32 s11, s{sRB64}, {48*1280}
            s_mul_i32 s12, s{sCB}, 160
            s_add_u32 s11, s11, s12
            s_movk_i32 s12, 1280
            s_mov_b32 m0, {PT}""")
        for n in range(8):
            a(f"""v_add_u32 v11, {64*n}, v1
                v_mul_u32_u24 v12, 6554, v11
                v_lshrrev_b32 v12, 16, v12
                v_mul_u32_u24 v13, 10, v12
                v_sub_u32 v13, v11, v13
                v_lshlrev_b32 v13, 4, v13
                v_mad_u32_u24 v13, v12, s12, v13""")
            if n == 7:
                a(f"v_cmp_gt_u32 vcc, 32, v1\nv_mov_b32 v12, {OOB}\ns_nop 0\nv_cndmask_b32 v13, v12, v13, vcc")
            a.vmem(f"buffer_load_dwordx4 v13, s[{rM1}:{rM1+3}], s11 offen {cfg.snt} lds", "side")
            if n < 7: a(f"s_add_u32 m0, m0, 1024")
        a(f"""s_and_b32 s11, s{sFB}, 1
            s_lshl1_add_u32 s11, s{sRB128}, s11
            s_lshl_b32 s11, s11, 6
            s_lshr_b32 s12, s{sFB}, 2
            s_lshl4_add_u32 s11, s12, s11
            s_bfe_u32 s12, s{sFB}, 0x10001
            s_lshl3_add_u32 s77, s12, s11
            s_mul_i32 s11, s77, 1280
            v_lshrrev_b32 v8, 3, v1
            v_and_b32 v9, 7, v1
            v_lshlrev_b32 v9, 4, v9
            v_mul_u32_u24 v10, 1280, v8
            v_add_u32 v10, v10, v9""")
        for it in range(10):
            a.vmem(f"buffer_load_dwordx4 v[{gX+4*it}:{gX+4*it+3}], v10, s[{rX}:{rX+3}], s11 offen offset:{128*it}", "side")
            a.vmem(f"buffer_load_dwordx4 v[{gW+4*it}:{gW+4*it+3}], v9, s[{rM2}:{rM2+3}], 0 offen offset:{128*it}", "side")
    def svc_count():
        srd(rM3, pDBG, 256)
        a(f"v_mov_b32 v11, 1\nv_mov_b32 v12, 0\ns_mov_b64 exec, 1")
        a.vmem(f"buffer_atomic_add v11, v12, s[{rM3}:{rM3+3}], 0 offen sc1", "cnt")
        a("s_mov_b64 exec, -1")
    def svc_pretile():
        a(f"""v_bfe_u32 v11, v1, 4, 1
            v_bfe_u32 v12, v1, 2, 2
            v_lshl_add_u32 v12, v11, 2, v12
            v_mul_u32_u24 v12, 160, v12
            v_lshrrev_b32 v13, 5, v1
            v_lshl_add_u32 v12, v13, 5, v12
            v_and_b32 v14, 3, v1
            v_lshl_add_u32 v12, v14, 3, v12
            v_add_u32 v12, {PT}, v12
            v_and_b32 v14, 15, v1
            v_lshl_add_u32 v14, v11, 5, v14
            v_lshlrev_b32 v14, 4, v14
            v_lshl_add_u32 v14, v13, 10, v14
            v_cmp_gt_u32 vcc, 32, v1
            v_mov_b32 v15, {OOB}""")
        for m in range(3):
            for u in range(3):
                r = pF + 4*(3*m+u)
                a(f"ds_read_b64_tr_b16 v[{r}:{r+1}], v12 offset:{m*2560+u*64}\nds_read_b64_tr_b16 v[{r+2}:{r+3}], v12 offset:{m*2560+u*64+1280}")
            if m == 0: a("v_cndmask_b32 v15, v15, v14, vcc")
        a(f"s_mul_i32 s13, s{sRB64}, 3\ns_mul_i32 s14, s{sCB}, 48")
        a("s_waitcnt lgkmcnt(0)")
        for m in range(3):
            a(f"""s_add_u32 s11, s13, {m}
                s_lshr_b32 s12, s11, 1
                s_add_u32 s12, s12, s14
                s_mul_i32 s12, s12, 5120
                s_and_b32 s11, s11, 1
                s_lshl_b32 s11, s11, 8
                s_add_u32 s11, s11, s12
                s_add_u32 s11, s11, {WDT}
                s_add_u32 s12, s11, 4096""")
            for u in range(3):
                r = pF + 4*(3*m+u)
                if u < 2: a.vmem(f"buffer_store_dwordx4 v[{r}:{r+3}], v14, s[{rWS}:{rWS+3}], s11 offen offset:{2048*u} sc1", "wdt")
                else:     a.vmem(f"buffer_store_dwordx4 v[{r}:{r+3}], v15, s[{rWS}:{rWS+3}], s12 offen sc1", "wdt")
    def svc_gate():
        a("v_mov_b32 v11, 0\nv_mov_b32 v12, 0")
        for i in range(40): a(f"v_dot2c_f32_bf16 v{11+(i&1)}, v{gX+i}, v{gW+i}")
        a("""s_nop 3
            v_add_f32 v11, v11, v12
            s_nop 1
            v_add_f32_dpp v11, v11, v11 quad_perm:[1,0,3,2] row_mask:0xf bank_mask:0xf
            s_nop 1
            v_add_f32_dpp v11, v11, v11 quad_perm:[2,3,0,1] row_mask:0xf bank_mask:0xf
            s_nop 1
            v_add_f32_dpp v11, v11, v11 row_half_mirror row_mask:0xf bank_mask:0xf
            v_cvt_pk_bf16_f32 v11, v11, v11
            v_lshlrev_b32 v11, 16, v11
            v_mul_f32 v11, 0xbfb8aa3b, v11
            v_exp_f32 v11, v11
            s_nop 0
            v_add_f32 v11, 1.0, v11
            v_rcp_f32 v11, v11
            s_nop 0
            v_cvt_pk_bf16_f32 v11, v11, v11
            v_lshlrev_b32 v11, 16, v11
            v_sub_f32 v12, 1.0, v11
            v_cvt_pk_bf16_f32 v11, v11, v12""")
        a(f"""v_lshlrev_b32 v13, 2, v8
            v_cmp_eq_u32 vcc, 0, v9
            v_mov_b32 v14, {OOB}
            s_lshl_b32 s11, s77, 2
            s_add_u32 s11, s11, {GATE}
            v_cndmask_b32 v13, v14, v13, vcc""")
        a.vmem(f"buffer_store_dword v11, v13, s[{rWS}:{rWS+3}], s11 offen sc1", "gate")
    def svc_flag():
        a(f"""s_lshl_b32 s11, s{sCB}, 5
            s_add_u32 s11, s11, s{sRB64}
            s_lshl_b32 s11, s11, 2
            s_add_u32 s11, s11, {S1FLAG}
            v_mov_b32 v11, s{sTAG}
            v_mov_b32 v12, 0
            s_mov_b64 exec, 1""")
        a.vmem(f"buffer_store_dword v11, v12, s[{rWS}:{rWS+3}], s11 offen sc1", "flag")
        a("s_mov_b64 exec, -1")
    def svc_poll():
        a(f"""v_and_b32 v14, 31, v1
            v_lshlrev_b32 v14, 2, v14
            s_lshl_b32 s78, s{sCB}, 7
            s_add_u32 s78, s78, {S1FLAG}""")
        a.vmem(f"buffer_load_dword v15, v14, s[{rWS}:{rWS+3}], s78 offen sc1", "poll")
    def svc_setflag():
        a(f"v_mov_b32 v12, {LFLAG}\nv_mov_b32 v13, 1\nds_write_b32 v12, v13\ns_waitcnt lgkmcnt(0)")
    def svc_init():
        a(f"v_mov_b32 v12, {LFLAG}\nv_mov_b32 v13, 0\nds_write_b32 v12, v13")
    def svc_check():
        a.vm_wait("poll")
        a(f"""v_cmp_ne_u32 vcc, s{sTAG}, v15
            s_mov_b32 s94, 0
            s_cmp_eq_u64 vcc, 0
            s_cbranch_scc0 L_chk_no
            s_mov_b32 s94, 1""")
        svc_setflag()
        a.label("L_chk_no")
    def svc_wtouch():
        if not cfg.wtouch: return
        a(f"""v_lshlrev_b32 v14, 7, v1
            s_lshr_b32 s11, s{sJ}, 2
            s_mul_i32 s11, s11, 30720
            s_mul_i32 s12, s{sCB}, 245760
            s_add_u32 s11, s11, s12
            s_add_u32 s11, s11, {WDT}""")
        for i in range(4):
            if i == 3: a("s_mov_b32 exec_hi, 0xffff")
            a.vmem(f"buffer_load_dword v{16+i}, v14, s[{rWS}:{rWS+3}], s11 offen sc1", "wt")
            a(f"s_add_u32 s11, s11, 8192")
        a("s_mov_b32 exec_hi, -1")
    aux_loop(svc_loads, {-1: svc_count, tc: seq(wait_tag('side'), svc_pretile), tc+1: svc_gate, cfg.tflag: svc_flag, cfg.tpoll: svc_poll, -2: svc_init},
             {cfg.tflag: wait_tag('gate'), tchk: svc_check})
    a("s_cmp_lg_u32 s94, 0\ns_cbranch_scc1 L_svc_ok")
    spin(14, 78, 15)
    svc_setflag()
    a.label("L_svc_ok")
    svc_wtouch()
    stamp_store(10)
    a("s_endpgm")

    a.label("L_comp")
    vWa,vWc,vXc,vXd = 4,5,6,7
    vXb = [8,9,10,11]
    FS=[48,104]; ACC=160
    a(f"""v_lshrrev_b32 v12, 5, v1
        v_bfe_u32 v13, v1, 2, 2
        v_lshl_add_u32 v13, v12, 3, v13
        v_mul_u32_u24 v{vWa}, 192, v13
        v_bfe_u32 v13, v1, 4, 1
        v_lshl_add_u32 v{vWa}, v13, 5, v{vWa}
        v_and_b32 v13, 3, v1
        v_lshl_add_u32 v{vWa}, v13, 3, v{vWa}
        v_and_b32 v13, 31, v1
        v_bfe_u32 v14, v1, 1, 3
        v_xor_b32 v14, v14, v12
        v_lshlrev_b32 v14, 4, v14
        v_lshl_add_u32 v14, v13, 7, v14
        s_lshl_b32 s11, s{sWAVE}, 12
        s_add_u32 s11, s11, {XB}
        v_add_u32 v{vXb[0]}, s11, v14
        v_xor_b32 v{vXb[1]}, 32, v{vXb[0]}
        v_xor_b32 v{vXb[2]}, 64, v{vXb[0]}
        v_xor_b32 v{vXb[3]}, 0x60, v{vXb[0]}
        s_waitcnt lgkmcnt(0)""")
    stamp(8)
    a(f"s_load_dword s{sTAG}, s[{pWS}:{pWS+1}], {EPOCH}")
    srd(rWS, pWS, WS_SIZE)
    srd(rX, pQ, 2621440)
    for i in range(96): a(f"v_mov_b32 v{ACC+i}, 0")
    def g1_reads(st, w, x0, x1):
        b = FS[st]; out = []
        for kk in range(2):
            out.append(f"ds_read_b128 v[{b+48+4*kk}:{b+51+4*kk}], v{x0 if kk==0 else x1}")
            for ft in range(3):
                for mat in range(2):
                    r = b + ((kk*3+ft)*2+mat)*4
                    o = mat*6144 + kk*3072 + ft*64
                    out.append(f"ds_read_b64_tr_b16 v[{r}:{r+1}], v{w} offset:{o}")
                    out.append(f"ds_read_b64_tr_b16 v[{r+2}:{r+3}], v{w} offset:{o+768}")
        return out
    def g1_mfmas(st):
        b = FS[st]; out = []
        for kk in range(2):
            for ft in range(3):
                for mat in range(2):
                    r = b + ((kk*3+ft)*2+mat)*4
                    c = ACC + (mat*3+ft)*16
                    out.append(f"v_mfma_f32_32x32x16_bf16 v[{c}:{c+15}], v[{r}:{r+3}], v[{b+48+4*kk}:{b+51+4*kk}], v[{c}:{c+15}]")
        return out
    mk_tag()
    a("s_barrier")
    stamp(1)
    for l in g1_reads(0, vWa, vXb[0], vXb[1]): a(l)
    sSB=68; sIT=69; sXS=70
    a(f"s_mov_b32 s{sSB}, 0\ns_mov_b32 s{sXS}, 0\ns_mov_b32 s{sIT}, {NST//2}\ns_mov_b32 m0, 16")
    a.label("L_g1")
    for st in range(2):
        a(f"""s_add_u32 s{sSB}, s{sSB}, {WSL}
            s_cmp_eq_u32 s{sSB}, {R*WSL}
            s_cselect_b32 s{sSB}, 0, s{sSB}
            v_add_u32 v{vWc}, s{sSB}, v{vWa}""")
        if st == 1: a(f"s_add_u32 s{sXS}, s{sXS}, {XSL}\ns_and_b32 s{sXS}, s{sXS}, {NX*XSL-1}")
        par = 1 - st
        a(f"""v_add_u32 v{vXc}, s{sXS}, v{vXb[2*par]}
            v_add_u32 v{vXd}, s{sXS}, v{vXb[2*par+1]}
            s_waitcnt lgkmcnt(0)""")
        stamp(0, 70)
        a("s_barrier")
        if cfg.stamps: a("s_add_u32 m0, m0, 1")
        rd = g1_reads(1-st, vWc, vXc, vXd); mf = g1_mfmas(st)
        k = 0
        for i, m in enumerate(mf):
            a(m)
            n = 3 if i < 8 else 2 if i == 8 else 0
            for _ in range(n):
                if k < len(rd): a(rd[k]); k += 1
        assert k == len(rd)
    a(f"s_sub_u32 s{sIT}, s{sIT}, 1\ns_cmp_lg_u32 s{sIT}, 0\ns_cbranch_scc1 L_g1")
    stamp(2)
    rstamp(61)
    vL=4; vL4=5; vH=[6,7,8,9]; vHS=10; vGt=11; vG3=[12,13,14]; vF=15; vP=2
    WSL_=[48+20*i for i in range(5)]; HSL=[16,32,148]; AC2=176
    sHo=72; sWo=73; sPV=76
    a(f"""s_lshr_b32 s11, s{sWAVE}, 1
        s_lshl1_add_u32 s11, s{sRB128}, s11
        s_mul_i32 s12, s11, {48*4096}
        s_mul_i32 s13, s{sFB}, {3*4096}
        s_add_u32 s12, s12, s13
        s_and_b32 s13, s{sWAVE}, 1
        s_lshl_b32 s14, s13, 11
        s_add_u32 s12, s12, s14
        s_add_u32 s70, s12, {HT}
        s_lshl_b32 s11, s11, 7
        s_lshl3_add_u32 s11, s{sFB}, s11
        s_lshl2_add_u32 s11, s13, s11
        s_add_u32 s71, s11, {HFLAG}
        v_and_b32 v{vHS}, 15, v1
        v_lshlrev_b32 v{vHS}, 4, v{vHS}
        v_bfe_u32 v11, v1, 4, 1
        v_lshl_add_u32 v{vHS}, v11, 10, v{vHS}
        v_lshrrev_b32 v11, 5, v1
        v_lshl_add_u32 v{vHS}, v11, 9, v{vHS}
        s_mov_b32 s74, 0xbfb8aa3b
        s_mov_b32 s75, 0xbfb8aa3b
        v_lshlrev_b32 v{vL}, 4, v1
        v_add_u32 v{vL4}, 4096, v{vL}
        s_mul_i32 s11, s{sWAVE}, 12
        s_mul_i32 s12, s{sCB}, 48
        s_add_u32 s12, s12, s11
        s_mul_i32 s{sWo}, s12, 5120
        s_add_u32 s{sWo}, s{sWo}, {WDT}
        s_mul_i32 s12, s{sRB64}, 48
        s_add_u32 s12, s12, s11
        s_lshl_b32 s{sHo}, s12, 12
        s_add_u32 s{sHo}, s{sHo}, {HT}
        s_mul_i32 s{sPV}, s{sWAVE}, {PRIV}
        s_waitcnt lgkmcnt(0)""")
    if cfg.prio: a("s_setprio 3")
    lds_flag_spin(16)
    a.vm_reset()
    def ld_wd(b, tag):
        for nt in range(5):
            a.vmem(f"buffer_load_dwordx4 v[{b+4*nt}:{b+4*nt+3}], v{vL if nt<4 else vL4}, s[{rWS}:{rWS+3}], s{sWo} offen offset:{1024*(nt&3)} sc1", tag)
        a(f"s_add_u32 s{sWo}, s{sWo}, 5120")
    def dma_wd(i, tag):
        a(f"s_add_u32 m0, s{sPV}, {i*5120}\ns_nop 0")
        for nt in range(4):
            a.vmem(f"buffer_load_dwordx4 v{vL}, s[{rWS}:{rWS+3}], s{sWo} offen offset:{1024*nt} sc1 lds", tag)
        a(f"s_add_u32 m0, s{sPV}, {i*5120+4096}\ns_nop 0")
        a.vmem(f"buffer_load_dwordx4 v{vL4}, s[{rWS}:{rWS+3}], s{sWo} offen sc1 lds", tag)
        a(f"s_add_u32 s{sWo}, s{sWo}, 5120")
    def ld_h(b, tag):
        for m in range(4):
            a.vmem(f"buffer_load_dwordx4 v[{b+4*m}:{b+4*m+3}], v{vH[m]}, s[{rWS}:{rWS+3}], s{sHo} offen sc1", tag)
        a(f"s_add_u32 s{sHo}, s{sHo}, 4096")
    T = 16
    wq = 0
    for ft in range(3):
        G = ACC + ft*16; U = ACC + (3+ft)*16; O = T + 8 + 8*(ft & 1)
        for grp in range(2):
            if grp == 0 and ft in (0, 2):
                for _ in range(2): ld_wd(WSL_[wq], f"w{wq}"); wq += 1
            prs = [8*grp + 2*i for i in range(4)]
            if cfg.mimic_h:
                for i, e in enumerate(prs): a(f"v_cvt_pk_bf16_f32 v{T+i}, v{G+e}, v{G+e+1}")
                for i, e in enumerate(prs): a(f"v_cvt_pk_bf16_f32 v{T+4+i}, v{U+e}, v{U+e+1}")
                for i, e in enumerate(prs): unpack(G+e, G+e+1, T+i)
                for i, e in enumerate(prs): unpack(U+e, U+e+1, T+4+i)
            for e in prs: a(f"v_mul_f32 v{G+e}, s74, v{G+e}\nv_mul_f32 v{G+e+1}, s74, v{G+e+1}")
            for e in prs: a(f"v_exp_f32 v{G+e}, v{G+e}\nv_exp_f32 v{G+e+1}, v{G+e+1}")
            for e in prs: a(f"v_add_f32 v{G+e}, 1.0, v{G+e}\nv_add_f32 v{G+e+1}, 1.0, v{G+e+1}")
            for e in prs: a(f"v_rcp_f32 v{G+e}, v{G+e}\nv_rcp_f32 v{G+e+1}, v{G+e+1}")
            if cfg.mimic_h:
                for i, e in enumerate(prs): a(f"v_cvt_pk_bf16_f32 v{T+i}, v{G+e}, v{G+e+1}")
                for i, e in enumerate(prs): unpack(G+e, G+e+1, T+i)
            for e in prs: a(f"v_mul_f32 v{G+e}, v{G+e}, v{U+e}\nv_mul_f32 v{G+e+1}, v{G+e+1}, v{U+e+1}")
            for i, e in enumerate(prs): a(f"v_cvt_pk_bf16_f32 v{O+4*grp+i}, v{G+e}, v{G+e+1}")
            a.vmem(f"buffer_store_dwordx4 v[{O+4*grp}:{O+4*grp+3}], v{vHS}, s[{rWS}:{rWS+3}], s70 offen offset:{256*grp} sc1", "hst")
        if ft < 2: a(f"s_add_u32 s70, s70, 4096"); stamp(12+ft)
    stamp(3)
    for m in range(4):
        a(f"s_add_u32 s11, s{sWAVE}, {m}\ns_and_b32 s11, s11, 3\ns_lshl_b32 s12, s11, 10\nv_add_u32 v{vH[m]}, s12, v{vL}")
    for n in range(3):
        a(f"""v_add_u32 v40, {64*n}, v1
            v_mul_u32_u24 v41, 6554, v40
            v_lshrrev_b32 v41, 16, v41
            v_mul_u32_u24 v42, 10, v41
            v_sub_u32 v42, v40, v42
            v_lshlrev_b32 v42, 4, v42
            v_mul_u32_u24 v41, 1280, v41
            v_add_u32 v{vG3[n]}, v41, v42""")
    a(f"v_cmp_gt_u32 vcc, 32, v1\nv_mov_b32 v40, {OOB}\nv_add_u32 v{vP}, s{sPV}, v{vL}\nv_cndmask_b32 v{vG3[2]}, v40, v{vG3[2]}, vcc")
    sRC=74
    a(f"""s_lshl2_add_u32 s11, s{sRB64}, s{sWAVE}
        s_mul_i32 s{sRC}, s11, {16*1280}
        s_mul_i32 s12, s{sCB}, 160
        s_add_u32 s{sRC}, s{sRC}, s12
        s_lshl_b32 s75, s11, 6
        s_add_u32 s75, s75, {GATE}
        s_mul_i32 s78, s{sWAVE}, 2560
        v_mov_b32 v40, s{sTAG}
        v_mov_b32 v41, 0
        v_and_b32 v{vF}, 7, v1
        v_lshlrev_b32 v{vF}, 2, v{vF}
        s_lshl_b32 s11, s{sRB64}, 7
        s_lshl_b32 s12, s{sWAVE}, 5
        s_add_u32 s11, s11, s12
        s_add_u32 s79, s11, {HFLAG}""")
    for i in range(80): a(f"v_mov_b32 v{AC2+i}, 0")
    a.vm_wait("hst")
    a(f"s_mov_b64 exec, 1\nbuffer_store_dword v40, v41, s[{rWS}:{rWS+3}], s71 offen sc1\ns_mov_b64 exec, -1")
    stamp(7)
    rstamp(62)
    ld_wd(WSL_[4], "w4")
    for i in range(5): dma_wd(i, f"w{5+i}")
    for n in range(3):
        a(f"s_add_u32 m0, s78, {QT+1024*n}\n" + ("s_mov_b32 exec_hi, 0" if n == 2 else "s_nop 0"))
        a.vmem(f"buffer_load_dwordx4 v{vG3[n]}, s[{rX}:{rX+3}], s{sRC} offen lds", "q")
    a("s_mov_b32 exec_hi, -1")
    spin(vF, 79, 42)
    stamp(4)
    a.vm_reset()
    for s in range(3): ld_h(HSL[s], f"h{s}")
    a(f"v_and_b32 v164, 15, v1\nv_lshlrev_b32 v164, 2, v164")
    a.vmem(f"buffer_load_dword v{vGt}, v164, s[{rWS}:{rWS+3}], s75 offen sc1", "gate")
    wslot = {s: WSL_[s] for s in range(5)}
    wslot.update({5: WSL_[0], 6: WSL_[1], 7: WSL_[0], 8: WSL_[1], 9: WSL_[0], 10: WSL_[2], 11: WSL_[3]})
    def rd_wd(s):
        b = wslot[s]
        return [f"ds_read_b128 v[{b+4*nt}:{b+4*nt+3}], v{vP} offset:{(s-5)*5120+nt*1024}" for nt in range(5)]
    for step in range(12):
        hb = HSL[step % 3]; wb = wslot[step]
        a.vm_wait(f"h{step}")
        if step >= 10: a.vm_wait(f"w{step}")
        if 5 <= step <= 9: a("s_waitcnt lgkmcnt(0)")
        stamp(40+step)
        rd = rd_wd(step+1) if 5 <= step+1 <= 9 else []
        i = 0
        for m in range(4):
            for nt in range(5):
                c = AC2 + (m*5+nt)*4
                a(f"v_mfma_f32_16x16x32_bf16 v[{c}:{c+3}], v[{wb+4*nt}:{wb+4*nt+3}], v[{hb+4*m}:{hb+4*m+3}], v[{c}:{c+3}]")
                if i < len(rd): a(rd[i])
                i += 1
        if step + 3 < 12: ld_h(hb, f"h{step+3}")
        if step in (2, 3): ld_wd(wslot[step+8], f"w{step+8}")
        if step == cfg.ystep - 2:
            a(f"""v_min_u32 v{vF}, 19, v1
                v_lshlrev_b32 v{vF}, 2, v{vF}
                s_mul_i32 s11, s{sCB}, 80
                s_mul_i32 s12, s{sWAVE}, 20
                s_add_u32 s77, s11, s12
                s_lshl_b32 s11, s77, 2
                s_add_u32 s79, s11, {YFLAG}""")
            a.vmem(f"buffer_load_dword v165, v{vF}, s[{rWS}:{rWS+3}], s79 offen sc1", "ypoll")
        if step == cfg.ystep:
            spin(vF, 79, 165, first_wait=wait_tag("ypoll"))
            stamp(9)
            a(f"""v_lshrrev_b32 v164, 3, v1
                v_and_b32 v165, 7, v1
                v_lshlrev_b32 v165, 4, v165
                v_lshl_add_u32 v164, v164, 12, v165
                s_lshl_b32 s11, s77, 12
                s_lshl_b32 s12, s{sRB64}, 7
                s_add_u32 s11, s11, s12
                s_add_u32 s11, s11, {YTW}""")
            for n in range(3):
                a(f"s_add_u32 m0, s78, {YT+1024*n}\n" + ("s_mov_b32 exec_hi, 0" if n == 2 else "s_nop 0"))
                a.vmem(f"buffer_load_dwordx4 v164, s[{rWS}:{rWS+3}], s11 offen sc1 lds", "y")
                if n < 2: a(f"s_add_u32 s11, s11, {8*4096}")
            a("s_mov_b32 exec_hi, -1")
    stamp(5)
    a("s_nop 7")
    for m in range(1, 4):
        for nt in range(5):
            c = AC2 + (m*5+nt)*4
            a(f"ds_write_b128 v{vP}, v[{c}:{c+3}] offset:{((m-1)*5+nt)*1024}")
    for m in range(1, 4):
        a(f"s_sub_u32 s11, s{sWAVE}, {m}\ns_and_b32 s11, s11, 3\ns_mul_i32 s11, s11, {PRIV}\nv_add_u32 v{15+m}, s11, v{vL}")
    a(f"""v_lshrrev_b32 v19, 2, v1
        v_lshlrev_b32 v19, 7, v19
        v_and_b32 v20, 3, v1
        v_lshl_add_u32 v19, v20, 3, v19
        s_lshl_b32 s11, s{sWAVE}, 5
        s_add_u32 s11, s11, {YT}
        v_add_u32 v19, s11, v19
        v_and_b32 v20, 15, v1
        v_mul_u32_u24 v20, 160, v20
        v_lshrrev_b32 v21, 4, v1
        v_lshl_add_u32 v20, v21, 3, v20
        v_add_u32 v21, s{sPV}, v20
        s_add_u32 s11, s78, {QT}
        v_add_u32 v20, s11, v20
        s_waitcnt vmcnt(0) lgkmcnt(0)
        s_barrier""")
    P=32; Y=96; Q=106; TT=116
    for sl in range(3):
        for nt in range(5):
            r = P + (sl*5+nt)*4
            a(f"ds_read_b128 v[{r}:{r+3}], v{16+sl} offset:{(sl*5+nt)*1024}")
    a("s_waitcnt lgkmcnt(5)")
    for nt in range(5): a(f"ds_read_b64_tr_b16 v[{Y+2*nt}:{Y+2*nt+1}], v19 offset:{nt*2048}")
    for nt in range(5): a(f"ds_read_b64 v[{Q+2*nt}:{Q+2*nt+1}], v20 offset:{nt*32}")
    a(f"v_lshlrev_b32 v22, 16, v{vGt}\nv_mov_b32 v23, v22\nv_and_b32 v24, 0xffff0000, v{vGt}\nv_mov_b32 v25, v24")
    a("s_waitcnt lgkmcnt(10)")
    for nt in range(5):
        c = AC2 + nt*4
        for sl in range(3):
            r = P + (sl*5+nt)*4
            a(f"v_pk_add_f32 v[{c}:{c+1}], v[{c}:{c+1}], v[{r}:{r+1}]\nv_pk_add_f32 v[{c+2}:{c+3}], v[{c+2}:{c+3}], v[{r+2}:{r+3}]")
    a("s_waitcnt lgkmcnt(0)")
    def rnd2(x):
        a(f"v_cvt_pk_bf16_f32 v{TT+8}, v{x}, v{x+1}"); unpack(x, x+1, TT+8)
    for nt in range(5):
        c = AC2 + nt*4
        for h in range(2):
            x = c + 2*h
            unpack(TT, TT+1, Y+2*nt+h); unpack(TT+2, TT+3, Q+2*nt+h)
            a(f"v_pk_mul_f32 v[{TT}:{TT+1}], v[{TT}:{TT+1}], v[{TT+2}:{TT+3}]")
            if cfg.mimic_o: rnd2(TT); rnd2(x)
            a(f"v_pk_mul_f32 v[{TT}:{TT+1}], v[{TT}:{TT+1}], v[22:23]")
            if cfg.mimic_o:
                a(f"v_pk_mul_f32 v[{x}:{x+1}], v[{x}:{x+1}], v[24:25]")
                rnd2(TT); rnd2(x)
                a(f"v_pk_add_f32 v[{x}:{x+1}], v[{x}:{x+1}], v[{TT}:{TT+1}]")
            else:
                a(f"v_pk_fma_f32 v[{x}:{x+1}], v[{x}:{x+1}], v[24:25], v[{TT}:{TT+1}]")
            a(f"v_cvt_pk_bf16_f32 v{TT+4+h}, v{x}, v{x+1}")
        a(f"ds_write_b64 v21, v[{TT+4}:{TT+5}] offset:{OTO+nt*32}")
    srd(rM1, pOUT, 2621440)
    a("s_waitcnt lgkmcnt(0)")
    for n in range(3): a(f"ds_read_b128 v[{P+4*n}:{P+4*n+3}], v{vP} offset:{OTO+1024*n}")
    for n in range(3):
        a(f"s_waitcnt lgkmcnt({2-n})\nbuffer_store_dwordx4 v[{P+4*n}:{P+4*n+3}], v{vG3[n]}, s[{rM1}:{rM1+3}], s{sRC} offen")
    stamp(6)
    rstamp(63)
    stamp_store(26)
    a(f"s_or_b32 s11, s2, s{sWAVE}\ns_cmp_lg_u32 s11, 0\ns_cbranch_scc1 L_end")
    srd(rM3, pDBG, 256)
    a(f"v_mov_b32 v19, 0\ns_mov_b32 s12, {cfg.spin_max}")
    a.label("L_ep")
    a(f"""buffer_load_dword v18, v19, s[{rM3}:{rM3+3}], 0 offen sc1
        s_waitcnt vmcnt(0)
        v_cmp_ne_u32 vcc, 0x100, v18
        s_sub_u32 s12, s12, 1
        s_cselect_b64 vcc, 0, vcc
        s_cmp_eq_u64 vcc, 0
        s_cbranch_scc0 L_ep
        v_mov_b32 v18, s{sTAG}
        s_mov_b64 exec, 1
        buffer_store_dword v18, v19, s[{rWS}:{rWS+3}], 0 offen sc1""")
    a.label("L_end")
    a("s_endpgm")
    a.label("L_code_end")
    body = a.text()
    ref = open(f"cdna_kernels/{NAME}.s.ref").read()
    head = [l for l in ref.split("\n") if l.startswith(";") and "@launch" not in l]
    out = "\n".join(head) + f"\n; @launch grid=(256,1,1) block=(512,1,1) lds={LDS_BYTES}\n"
    out += f""".amdgcn_target "amdgcn-amd-amdhsa--gfx950"
.text
.globl {NAME}_kernel
.p2align 8
.type {NAME}_kernel,@function
{NAME}_kernel:
{body}.section .rodata,"a"
.p2align 6
.amdhsa_kernel {NAME}_kernel
  .amdhsa_next_free_vgpr 256
  .amdhsa_next_free_sgpr 102
  .amdhsa_accum_offset 256
  .amdhsa_group_segment_fixed_size 0
  .amdhsa_kernarg_size 112
  .amdhsa_user_sgpr_count 2
  .amdhsa_user_sgpr_kernarg_segment_ptr 1
  .amdhsa_system_sgpr_workgroup_id_x 1
.end_amdhsa_kernel
"""
    return out, body

if __name__ == "__main__":
    outp = sys.argv[1] if len(sys.argv) > 1 else "k.s"
    for kv in sys.argv[2:]:
        k, v = kv.split("="); setattr(cfg, k, eval(v))
    out, body = gen(cfg)
    errs = check_hazards(body)
    for e in errs: print("HAZARD", e)
    open(outp, "w").write(out)
    print("wrote", outp, len(out), "bytes;", len(errs), "hazards")
```

```python
import sys, re
from asmlib import *
NAME = "gated_mix__ssm_conv_h3__glu_gated_glu__prompt"
EPOCH=0; S1FLAG=0x1000; HFLAG=0x2000; YFLAG=0x4000; GATE=0x8000; STAMP=0x10000
KVR=0x100000; WDT=0x400000; HT=0x600000; YTW=0xC00000; WS_SIZE=0x1000000
OOB = 0x80000000

class Cfg:
    stamps = 0
    spin_max = 1 << 16
    psleep = 6
    tflag = 4
    tpoll = 12
    tchk = 15
    tconv = 16
    pre_n = 4
    ystep = 8
    wepi = 2
    g1spread = [2,3,2,3,2,3,2,3,2,2,2,0]
    cprio = 1
    la = 3
    lp = 2
    lsleep = 1
    aprio = 2
cfg = Cfg()

def gen(cfg):
    R = 6; WSL = 12288; XB = R*WSL; XSL = 16384; NX = 4
    CB = XB + 3*XSL
    HE=0; HO=4160; XR=8320; CSZ=12928
    T1 = XB + 4*XSL; PT = T1 + 11520; DUMMY = PT + 8192
    CTRL = CB + 3*CSZ + 128
    LAND=CTRL; CONS=CTRL+16; F_S1=CTRL+32; F_WD=CTRL+36; C_H=CTRL+40; C_G=CTRL+44; CDUM=CTRL+64; GW=CTRL+384
    LDS_BYTES = 163840
    assert GW + 1280 + 256 <= LDS_BYTES and DUMMY + 600 <= CTRL
    PRIV = 25600; QT = 102400; YT = 112640; OTO = 15360
    a = Asm()
    NST = 20
    sWAVE=3; sX=4; sJ=5; sRB128=6; sFB=7; sRB64=8; sCB=9; sTAG=10
    pQ,pK,pV,pSH,pSK,pSD,pBX,pWG,pWU,pWD,pGW,pOUT,pDBG,pWS = [16+2*i for i in range(14)]
    rWS=44; rX=48; rW=52; rM1=56; rM2=60; rM3=64; rSK=84
    sMASK=101
    def srd(r, p, size):
        a(f"s_mov_b64 s[{r}:{r+1}], s[{p}:{p+1}]\ns_mov_b32 s{r+2}, {size}\ns_mov_b32 s{r+3}, 0x20000")
    def stamp(k, sreg=None):
        if cfg.stamps == 2 or (cfg.stamps == 3 and sreg is None and k < 16):
            a(f"s_memtime s[80:81]\ns_waitcnt lgkmcnt(0)\nv_writelane_b32 v3, s80, {k if sreg is None else 'm0'}")
    def rstamp(k):
        if cfg.stamps:
            a(f"s_memrealtime s[80:81]\ns_waitcnt lgkmcnt(0)\nv_writelane_b32 v3, s80, {k}")
    def stamp_store(vtmp):
        if not cfg.stamps: return
        a(f"s_lshl_b32 s11, s2, 3\ns_add_u32 s11, s11, s{sWAVE}\ns_lshl_b32 s11, s11, 8\ns_add_u32 s11, s11, {STAMP}")
        a(f"v_lshlrev_b32 v{vtmp}, 2, v1\nbuffer_store_dword v3, v{vtmp}, s[{rWS}:{rWS+3}], s11 offen\ns_waitcnt vmcnt(0)")
    lab = [0]
    def newlab(p): lab[0] += 1; return f"L_{p}{lab[0]}"
    def poll_issue(voff, soff, vt, n, tag=None):
        op = {1: "dword", 2: "dwordx2"}[n]
        a.vmem(f"buffer_load_{op} {vr(vt, n)}, v{voff}, s[{rWS}:{rWS+3}], s{soff} offen sc1", tag)
    def poll_cmp(vt, n):
        if n == 2: a(f"v_xor_b32 v{vt}, s{sTAG}, v{vt}\nv_xor_b32 v{vt+1}, s{sTAG}, v{vt+1}\nv_or_b32 v{vt}, v{vt}, v{vt+1}\nv_cmp_ne_u32 vcc, 0, v{vt}")
        else: a(f"v_cmp_ne_u32 vcc, s{sTAG}, v{vt}")
    def spin(voff, soff, vt, n=1, first_wait=None):
        L = newlab("spin")
        a(f"s_mov_b32 s12, {cfg.spin_max}")
        if first_wait is not None:
            first_wait(); a(f"s_branch {L}_chk")
        else:
            a(f"s_branch {L}_ld")
        a.label(L)
        a(f"s_sleep {cfg.psleep}")
        a.label(L + "_ld")
        keep = list(a.vm); poll_issue(voff, soff, vt, n); a.vm = keep
        a("s_waitcnt vmcnt(0)")
        a.label(L + "_chk")
        poll_cmp(vt, n)
        a(f"s_sub_u32 s12, s12, 1\ns_cselect_b64 vcc, 0, vcc\ns_cmp_eq_u64 vcc, 0\ns_cbranch_scc0 {L}")
    def unpack(dlo, dhi, src):
        a(f"v_lshlrev_b32 v{dlo}, 16, v{src}\nv_and_b32 v{dhi}, s{sMASK}, v{src}")
    def seq(*fs):
        def g():
            for f in fs: f()
        return g
    def wait_tag(tag): return lambda: a.vm_wait(tag)
    def mk_tag(): a(f"s_waitcnt lgkmcnt(0)\ns_mul_i32 s{sTAG}, s{sTAG}, 0x9E3779B1\ns_add_u32 s{sTAG}, s{sTAG}, 0x7F4A7C15")
    vCT = 0
    def lds_spin(off, val, vt, quad=False):
        L = newlab("ls")
        a(f"s_mov_b32 s12, {cfg.spin_max*16}")
        if cfg.lsleep: a(f"s_branch {L}_rd")
        a.label(L)
        if cfg.lsleep:
            a(f"s_sleep {cfg.lsleep}")
            a.label(L + "_rd")
        if quad:
            a(f"""ds_read_b128 v[{vt}:{vt+3}], v{vCT} offset:{off-CTRL}
                s_waitcnt lgkmcnt(0)
                v_min_u32 v{vt}, v{vt}, v{vt+1}
                v_min3_u32 v{vt}, v{vt}, v{vt+2}, v{vt+3}
                s_nop 0""")
        else:
            a(f"ds_read_b32 v{vt}, v{vCT} offset:{off-CTRL}\ns_waitcnt lgkmcnt(0)")
        a(f"""v_readfirstlane_b32 s11, v{vt}
            s_sub_u32 s12, s12, 1
            s_cselect_b32 s11, -1, s11
            s_cmp_lt_u32 s11, {val}
            s_cbranch_scc1 {L}""")
    def lds_set(off, val, vt):
        a(f"v_mov_b32 v{vt}, {val}\ns_mov_b64 exec, 1\nds_write_b32 v{vCT}, v{vt} offset:{off-CTRL}\ns_mov_b64 exec, -1")
    def lds_inc(off, vt):
        a(f"v_mov_b32 v{vt}, 1\ns_mov_b64 exec, 1\nds_add_u32 v{vCT}, v{vt} offset:{off-CTRL}\ns_mov_b64 exec, -1")
    def gflag(soff, vt):
        a(f"v_mov_b32 v{vt}, s{sTAG}\nv_mov_b32 v{vt+1}, 0\ns_mov_b64 exec, 1")
        a.vmem(f"buffer_store_dword v{vt}, v{vt+1}, s[{rWS}:{rWS+3}], s{soff} offen sc1", "flag")
        a("s_mov_b64 exec, -1")

    a("s_cmp_ge_u32 s2, 256\ns_cbranch_scc1 L_end")
    stamp(0); rstamp(60)
    a("s_load_dwordx16 s[16:31], s[0:1], 0\ns_load_dwordx8 s[32:39], s[0:1], 64\ns_load_dwordx4 s[40:43], s[0:1], 96")
    a(f"v_lshrrev_b32 v2, 6, v0\nv_and_b32 v1, 63, v0\ns_mov_b32 s{sMASK}, 0xffff0000")
    a("s_getpc_b64 s[14:15]")
    a.label("L_pc")
    a("v_lshlrev_b32 v4, 7, v0\nv_min_u32 v4, L_code_end-L_pc-4, v4")
    a(f"v_readfirstlane_b32 s{sWAVE}, v2")
    a("v_cmp_gt_u32 vcc, (L_code_end-L_pc+127)/128, v0\ns_and_saveexec_b64 s[12:13], vcc\ns_cbranch_execz L_nopf")
    a("global_load_dword v135, v4, s[14:15]")
    a.label("L_nopf")
    a(f"s_mov_b64 exec, -1\nv_mov_b32 v{vCT}, {CTRL}")
    a(f"""s_and_b32 s{sX}, s2, 7
        s_lshr_b32 s{sJ}, s2, 3
        s_and_b32 s11, s{sX}, 1
        s_lshr_b32 s12, s{sX}, 1
        s_and_b32 s13, s{sJ}, 7
        s_lshl3_add_u32 s{sRB128}, s11, s13
        s_lshr_b32 s13, s{sJ}, 3
        s_lshl2_add_u32 s{sFB}, s12, s13
        s_and_b32 s13, s{sJ}, 3
        s_lshl2_add_u32 s{sCB}, s11, s13
        s_lshr_b32 s13, s{sJ}, 2
        s_lshl3_add_u32 s{sRB64}, s12, s13
        s_cmp_lt_u32 s{sWAVE}, 4
        s_cbranch_scc1 L_comp""")

    sA=68; sLW=69; sLX=70; sOW=71; sOX=72; sOX2=73
    vW0,vW1,vW2,vXe,vXo = 4,5,6,7,2
    vLA=14
    vGx=136; vGw=137; vGx2=138; vGa=140
    a(f"s_sub_u32 s{sA}, s{sWAVE}, 4")
    a("s_mov_b32 s11, 43691\ns_movk_i32 s12, 3072")
    for i, v in enumerate((vW0,vW1,vW2)):
        a(f"""v_add_u32 v8, {64*i}, v1
            v_mul_u32_u24 v9, s11, v8
            v_lshrrev_b32 v9, 19, v9
            v_mul_u32_u24 v10, 12, v9
            v_sub_u32 v8, v8, v10
            v_lshlrev_b32 v8, 4, v8
            v_mad_u32_u24 v{v}, v9, s12, v8""")
        if i: a(f"v_subrev_u32 v{v}, {1024*i}, v{v}")
    a(f"""v_lshrrev_b32 v8, 3, v1
        v_mul_u32_u24 v8, 1280, v8
        v_lshrrev_b32 v9, 4, v1
        v_xor_b32 v9, v9, v1
        v_and_b32 v9, 7, v9
        v_lshl_add_u32 v{vXe}, v9, 4, v8
        v_xor_b32 v9, 4, v9
        v_lshl_add_u32 v{vXo}, v9, 4, v8
        v_add_u32 v{vXo}, {10240-1024}, v{vXo}
        s_and_b32 s11, s{sA}, 1
        s_lshr_b32 s12, s{sA}, 1
        s_mul_i32 s{sLW}, s12, 6144
        s_mul_i32 s13, s11, 3072
        s_add_u32 s{sLW}, s{sLW}, s13
        s_lshl_b32 s{sLX}, s{sA}, 12
        s_add_u32 s{sLX}, s{sLX}, {XB}
        s_mul_i32 s{sOW}, s{sFB}, 192
        s_mul_i32 s13, s11, 49152
        s_add_u32 s{sOW}, s{sOW}, s13
        s_lshl2_add_u32 s13, s{sRB128}, s{sA}
        s_mul_i32 s{sOX}, s13, 40960
        s_add_u32 s{sOX2}, s{sOX}, {20480-2048}
        s_waitcnt lgkmcnt(0)""")
    stamp(8)
    a(f"s_load_dword s{sTAG}, s[{pWS}:{pWS+1}], {EPOCH}")
    a(f"s_cmp_lt_u32 s{sA}, 2\ns_cselect_b64 s[{rW}:{rW+1}], s[{pWG}:{pWG+1}], s[{pWU}:{pWU+1}]\ns_mov_b32 s{rW+2}, 1966080\ns_mov_b32 s{rW+3}, 0x20000")
    srd(rX, pQ, 2621440)
    def x_half(u, half, tag):
        a(f"s_add_u32 m0, s{sLX}, {(u % NX)*XSL}\ns_nop 0")
        so = sOX if half == 0 else sOX2
        a.vmem(f"buffer_load_dwordx4 v{vXe}, s[{rX}:{rX+3}], s{so} offen offset:{2048*half} lds", tag)
        a.vmem(f"buffer_load_dwordx4 v{vXo}, s[{rX}:{rX+3}], s{so} offen offset:{2048*half+1024} lds", tag)
        a(f"s_add_u32 s{so}, s{so}, 128")
    def dma_stage(t):
        tag = f"dma{t}"
        if t == 0: x_half(0, 0, tag)
        if t % 2 == 0: x_half(t//2, 1, tag)
        a(f"s_add_u32 m0, s{sLW}, {(t % R)*WSL}\ns_nop 0")
        for i, v in enumerate((vW0,vW1,vW2)):
            a.vmem(f"buffer_load_dwordx4 v{v}, s[{rW}:{rW+3}], s{sOW} offen offset:{1024*i} lds", tag)
        a(f"s_add_u32 s{sOW}, s{sOW}, 98304")
        if t % 2 == 1 and t + 1 < NST: x_half((t+1)//2, 0, tag + "x")
    a.vm_reset()
    dma_stage(0); dma_stage(1)
    srd(rWS, pWS, WS_SIZE)
    a(f"""s_lshl_b32 s11, s{sCB}, 5
        s_add_u32 s11, s11, s{sRB64}
        s_lshl_b32 s11, s11, 4
        s_lshl2_add_u32 s11, s{sA}, s11
        s_add_u32 s78, s11, {S1FLAG}""")
    vm_common = list(a.vm)
    a(f"s_cmp_eq_u32 s{sWAVE}, 7\ns_cbranch_scc1 L_svc")

    def gate_setup():
        a(f"""s_lshr_b32 s11, s{sFB}, 1
            s_lshl_b32 s11, s11, 4
            v_and_b32 v10, 15, v1
            v_add_u32 v10, s11, v10
            v_lshrrev_b32 v11, 4, v1
            v_lshlrev_b32 v{vGw}, 4, v11
            v_add_u32 v{vGw}, {GW}, v{vGw}
            v_bfe_u32 v12, v10, 1, 3
            v_xor_b32 v11, v11, v12
            v_lshlrev_b32 v11, 4, v11
            v_lshl_add_u32 v11, v10, 7, v11
            v_add_u32 v{vGx}, {XB}, v11
            v_xor_b32 v{vGx2}, 64, v{vGx}""")
        for i in range(4): a(f"v_mov_b32 v{vGa+i}, 0")
    def gate_rd(u):
        a(f"""ds_read_b128 v[144:147], v{vGx} offset:{(u % NX)*XSL}
            ds_read_b128 v[148:151], v{vGw} offset:{128*u}
            ds_read_b128 v[152:155], v{vGx2} offset:{(u % NX)*XSL}
            ds_read_b128 v[156:159], v{vGw} offset:{128*u+64}""")
    def gate_dot():
        a(f"""s_waitcnt lgkmcnt(0)
            v_mfma_f32_16x16x32_bf16 v[{vGa}:{vGa+3}], v[148:151], v[144:147], v[{vGa}:{vGa+3}]
            v_mfma_f32_16x16x32_bf16 v[{vGa}:{vGa+3}], v[156:159], v[152:155], v[{vGa}:{vGa+3}]""")
    def gate_fin():
        g = vGa
        a(f"""s_lshl_b32 s11, s{sRB128}, 9
            s_lshr_b32 s12, s{sFB}, 1
            s_lshl_b32 s12, s12, 6
            s_add_u32 s11, s11, s12
            s_add_u32 s11, s11, {GATE}
            s_and_b32 s12, s{sFB}, 1
            s_lshl_b32 s12, s12, 3
            s_lshl_b32 s12, 0xff, s12
            s_nop 0
            v_cvt_pk_bf16_f32 v{g}, v{g}, v{g}
            v_lshlrev_b32 v{g}, 16, v{g}
            v_mul_f32 v{g}, 0xbfb8aa3b, v{g}
            v_exp_f32 v{g}, v{g}
            s_nop 0
            v_add_f32 v{g}, 1.0, v{g}
            v_rcp_f32 v{g}, v{g}
            s_nop 0
            v_cvt_pk_bf16_f32 v{g}, v{g}, v{g}
            v_lshlrev_b32 v{g}, 16, v{g}
            v_sub_f32 v{g+1}, 1.0, v{g}
            v_cvt_pk_bf16_f32 v{g}, v{g}, v{g+1}
            v_lshlrev_b32 v{g+1}, 2, v1
            s_mov_b32 exec_lo, s12
            s_mov_b32 exec_hi, 0""")
        a.vmem(f"buffer_store_dword v{g}, v{g+1}, s[{rWS}:{rWS+3}], s11 offen sc1", "gate")
        a("s_mov_b64 exec, -1")
    def aux_loop(side, gate=False):
        if 'pre' in side: side['pre']()
        a(f"s_setprio {cfg.aprio}")
        mk_tag()
        stamp(9)
        a.vm_wait("dma0"); stamp(10)
        for t in range(2, cfg.pre_n): dma_stage(t)
        a("s_waitcnt lgkmcnt(0)\ns_barrier")
        if 'post' in side: side['post']()
        for t in range(cfg.pre_n, 5): dma_stage(t)
        if gate: gate_rd(0)
        for t in range(NST):
            if t + 1 < NST: a.vm_wait(f"dma{t+1}")
            stamp(16+t)
            a("s_barrier")
            stamp(40+t)
            if t + 5 < NST: dma_stage(t+5)
            if gate and t % 2 == 0: gate_dot()
            if gate and t % 2 == 1 and t + 1 < NST: gate_rd((t+1)//2)
            if t == cfg.tflag:
                a.vm_wait("st1"); gflag(78, 160)
            if gate and t == NST-2: gate_fin()
            if t in side: side[t]()

    vK=136; vV=48; vSw=126
    vKh,vK0,vK1,vSh,vT1 = 41,42,43,44,45
    def s1_store():
        a(f"""s_lshl_b32 s11, s{sA}, 6
            v_add_u32 v69, s11, v1
            v_lshrrev_b32 v67, 3, v69
            v_and_b32 v68, 7, v69
            v_lshlrev_b32 v68, 4, v68
            v_mul_u32_u24 v64, 144, v67
            s_mov_b32 s12, {T1}
            v_add3_u32 v64, v64, v68, s12
            v_lshl_add_u32 v65, v67, 12, v68
            s_mul_i32 s11, s{sCB}, {80*4096}
            s_lshl_b32 s12, s{sRB64}, 7
            s_sub_u32 s11, s11, s12
            s_add_u32 s11, s11, {KVR+1984*2}
            v_cmp_gt_u32 vcc, 64, v69
            v_mov_b32 v67, {OOB}""")
        for i in range(4):
            a(f"ds_read_b128 v[{72+4*i}:{72+4*i+3}], v64 offset:{i*24*144}")
        a("v_cndmask_b32 v66, v67, v65, vcc")
        for i in range(4):
            a(f"s_waitcnt lgkmcnt({3-i})")
            a.vmem(f"buffer_store_dwordx4 v[{72+4*i}:{72+4*i+3}], v{65 if i<3 else 66}, s[{rWS}:{rWS+3}], s11 offen sc1", "st1")
            if i < 3: a(f"s_add_u32 s11, s11, {24*4096}")
    sD=74; sCR=75; sDv=76; sVal=77
    vA=[16,17,18,19]; vB=20; vE=21
    cAcc=32; cS=[64,128]
    def conv_ids():
        a(f"""s_cmp_lt_u32 s{sRB64}, 16
            s_cselect_b32 s11, 3, 2
            s_cselect_b32 s12, 0, 16
            s_cmp_lt_u32 s{sA}, s11
            s_cselect_b32 s{sVal}, 1, 0
            s_cselect_b32 s14, s{sA}, 0
            s_mul_i32 s13, s{sRB64}, s11
            s_add_u32 s13, s13, s12
            s_mul_i32 s{sD}, s{sCB}, 80
            s_add_u32 s{sD}, s{sD}, s13
            s_add_u32 s{sD}, s{sD}, s14
            s_mul_i32 s{sCR}, s{sA}, {CSZ}
            s_add_u32 s{sCR}, s{sCR}, {CB}
            s_lshl_b32 s11, s{sD}, 1
            s_and_b32 s11, s11, 0xfffffffc
            s_load_dword s{sDv}, s[{pSD}:{pSD+1}], s11""")
        srd(rSK, pSK, 2621440)
        a(f"""v_and_b32 v10, 15, v1
            v_lshrrev_b32 v11, 4, v1
            v_and_b32 v12, 1, v1
            v_lshlrev_b32 v13, 1, v10
            v_lshl_add_u32 v13, v11, 4, v13
            v_cmp_eq_u32 vcc, 1, v12
            v_mov_b32 v8, {HO+32-32}
            v_mov_b32 v9, {HE+32-30}
            v_cndmask_b32 v8, v8, v9, vcc
            v_add3_u32 v{vA[0]}, v13, v8, s{sCR}
            v_add_u32 v{vA[1]}, 1024, v{vA[0]}
            v_add_u32 v{vA[2]}, 2048, v{vA[0]}
            v_add_u32 v{vA[3]}, 3072, v{vA[0]}
            v_lshlrev_b32 v13, 5, v10
            v_lshlrev_b32 v8, 4, v11
            v_sub_u32 v8, v8, v13
            v_add_u32 v8, {XR+4064-3584}, v8
            v_add_u32 v{vB}, s{sCR}, v8
            v_lshlrev_b32 v8, 3, v11
            v_add_u32 v8, v8, v13
            v_add_u32 v22, s{sCR}, v8
            v_sub_u32 v{vE}, {XR+4088-3584}, v8
            v_add_u32 v{vE}, s{sCR}, v{vE}
            v_lshlrev_b32 v8, 4, v1
            v_add_u32 v9, 2, v8
            v_add_u32 v23, s{sCR}, v8
            s_waitcnt lgkmcnt(0)
            s_bitcmp1_b32 s{sD}, 0
            s_cselect_b32 s12, 0, 16
            s_lshl_b32 s{sDv}, s{sDv}, s12
            s_and_b32 s{sDv}, s{sDv}, 0xffff0000""")
        for i in range(32): a(f"v_mov_b32 v{cAcc+i}, 0")
    def conv_pre():
        a(f"""s_cmp_eq_u32 s{sVal}, 0
            s_cselect_b32 s12, {OOB}, 0
            v_add_u32 v8, s12, v8
            v_add_u32 v9, s12, v9
            s_lshl_b32 s79, s{sD}, 12
            s_add_u32 m0, s{sCR}, {HE+32}
            v_mov_b32 v12, 0
            v_mov_b32 v13, 0""")
        for i in range(4): a.vmem(f"buffer_load_dwordx4 v8, s[{rSK}:{rSK+3}], s79 offen offset:{1024*i} lds", "he")
        a(f"s_add_u32 m0, s{sCR}, {HO+32}\ns_nop 0")
        for i in range(2): a.vmem(f"buffer_load_dwordx4 v9, s[{rSK}:{rSK+3}], s79 offen offset:{1024*i} lds", "he")
    def conv_pre2():
        for i in range(2, 4): a.vmem(f"buffer_load_dwordx4 v9, s[{rSK}:{rSK+3}], s79 offen offset:{1024*i} lds", "he")
        a(f"""v_lshlrev_b32 v10, 3, v1
            v_add_u32 v10, s{sCR}, v10
            ds_write_b64 v10, v[12:13] offset:{XR+4096}
            v_and_b32 v11, 3, v1
            v_lshlrev_b32 v11, 3, v11
            v_add_u32 v11, s{sCR}, v11
            ds_write_b64 v11, v[12:13] offset:{HE}
            ds_write_b64 v11, v[12:13] offset:{HO}
            ds_read_b32 v152, v{vCT} offset:{F_S1-CTRL}
            s_add_u32 s79, s79, {KVR}""")
    def xr_issue():
        a(f"s_add_u32 m0, s{sCR}, {XR}\ns_nop 0")
        for i in range(4): a(f"buffer_load_dwordx4 v8, s[{rWS}:{rWS+3}], s79 offen offset:{1024*i} sc1 lds")
    def conv_xr():
        a("s_waitcnt lgkmcnt(0)\nv_readfirstlane_b32 s94, v152\ns_cmp_eq_u32 s94, 0\ns_cbranch_scc1 L_xr_skip")
        xr_issue()
        a.label("L_xr_skip")
    aux_loop({'pre': conv_ids, 'post': s1_store, cfg.tconv: conv_pre, cfg.tconv+1: conv_pre2, NST-2: conv_xr})
    a("s_barrier")
    stamp(1)
    a("s_setprio 0")
    a(f"s_cmp_eq_u32 s{sVal}, 0\ns_cbranch_scc1 L_end")
    a("s_cmp_lg_u32 s94, 0\ns_cbranch_scc1 L_xr_done")
    lds_spin(F_S1, 1, 148)
    xr_issue()
    a.label("L_xr_done")
    a("s_waitcnt vmcnt(4)")
    a(f"""v_mov_b32 v10, s{sCR}
        ds_read_b32 v11, v10 offset:{HE+32}
        s_waitcnt lgkmcnt(0)
        v_lshlrev_b32 v11, 16, v11
        ds_write_b32 v10, v11 offset:{HO+28}
        s_waitcnt vmcnt(0)""")
    def conv_reads(st, cp):
        base = cS[st]; out = []
        def rdA(C):
            o = (C&1)*128 + cp*16
            r = base+4*C
            return [f"ds_read2_b32 v[{r}:{r+1}], v{vA[C>>1]} offset0:{o} offset1:{o+1}",
                    f"ds_read2_b32 v[{r+2}:{r+3}], v{vA[C>>1]} offset0:{o+2} offset1:{o+3}"]
        def rdB(U):
            r = base+32+4*U
            return [f"ds_read_b128 v[{r}:{r+3}], v{vB} offset:{(7-U)*512+cp*64}"]
        out += rdA(0)
        for U in range(8): out += rdB(U)
        for C in range(1,8): out += rdA(C)
        return out
    def conv_mfmas(st):
        base = cS[st]; out = []
        for C in range(8):
            for J in range(C, 8):
                U = J-C
                out.append(f"v_mfma_f32_16x16x32_bf16 v[{cAcc+4*J}:{cAcc+4*J+3}], v[{base+4*C}:{base+4*C+3}], v[{base+32+4*U}:{base+32+4*U+3}], v[{cAcc+4*J}:{cAcc+4*J+3}]")
        return out
    stamp(2)
    for l in conv_reads(0, 0): a(l)
    a("s_mov_b32 s11, 4")
    a.label("L_conv")
    for st in range(2):
        a("s_waitcnt lgkmcnt(0)")
        if st == 1:
            for v in vA + [vB]: a(f"v_add_u32 v{v}, 128, v{v}")
        rd = conv_reads(1-st, 1 if st == 0 else 0)
        mf = conv_mfmas(st)
        for i, m in enumerate(mf):
            a(m)
            if i < len(rd): a(rd[i])
    a("s_sub_u32 s11, s11, 1\ns_cmp_lg_u32 s11, 0\ns_cbranch_scc1 L_conv")
    stamp(3)
    a("s_setprio 3\ns_waitcnt lgkmcnt(0)")
    for J in range(8): a(f"ds_read_b64 v[{64+2*J}:{65+2*J}], v{vE} offset:{(7-J)*512}")
    a(f"s_lshl_b32 s13, s{sD}, 12\ns_add_u32 s13, s13, {YTW}\ns_lshl_b32 s14, s{sD}, 2\ns_add_u32 s14, s14, {YFLAG}")
    for J in range(8):
        A = cAcc+4*J; K = 64+2*J; T = 96
        a(f"""s_waitcnt lgkmcnt({min(15, 7-J+J)})
            v_and_b32 v{T}, s{sMASK}, v{K+1}
            v_lshlrev_b32 v{T+1}, 16, v{K+1}
            v_and_b32 v{T+2}, s{sMASK}, v{K}
            v_lshlrev_b32 v{T+3}, 16, v{K}
            v_fmac_f32 v{A}, s{sDv}, v{T}
            v_fmac_f32 v{A+1}, s{sDv}, v{T+1}
            v_fmac_f32 v{A+2}, s{sDv}, v{T+2}
            v_fmac_f32 v{A+3}, s{sDv}, v{T+3}
            v_cvt_pk_bf16_f32 v{K}, v{A}, v{A+1}
            v_cvt_pk_bf16_f32 v{K+1}, v{A+2}, v{A+3}
            ds_write_b64 v22, v[{K}:{K+1}] offset:{512*J}""")
    a("s_waitcnt lgkmcnt(0)")
    for i in range(4): a(f"ds_read_b128 v[{96+4*i}:{99+4*i}], v23 offset:{1024*i}")
    stamp(5)
    for i in range(4):
        a(f"s_waitcnt lgkmcnt({3-i})\nbuffer_store_dwordx4 v[{96+4*i}:{99+4*i}], v8, s[{rWS}:{rWS+3}], s13 offen offset:{1024*i} sc1")
    stamp(6)
    a("s_waitcnt vmcnt(0)")
    gflag(14, 12)
    stamp(4)
    stamp_store(10)
    a("s_endpgm")

    a.label("L_svc")
    a.vm = list(vm_common)
    pF=100
    def svc_init():
        srd(rM2, pGW, 1280)
        a(f"""v_mov_b32 v8, 0
            v_mov_b32 v9, 0
            v_mov_b32 v10, 0
            v_mov_b32 v11, 0
            s_mov_b64 exec, 1
            ds_write_b128 v{vCT}, v[8:11] offset:{F_S1-CTRL}
            s_mov_b64 exec, -1
            v_lshlrev_b32 v8, 4, v1
            s_mov_b32 m0, {GW}
            s_nop 0""")
        a.vmem(f"buffer_load_dwordx4 v8, s[{rM2}:{rM2+3}], 0 offen lds", "gw")
        a("s_mov_b64 exec, 0xffff")
        a.vmem(f"buffer_load_dwordx4 v8, s[{rM2}:{rM2+3}], 0 offen offset:1024 lds", "gw")
        a("s_mov_b64 exec, -1")
    def svc_pretile():
        a(f"""v_bfe_u32 v11, v1, 4, 1
            v_bfe_u32 v12, v1, 2, 2
            v_lshl_add_u32 v12, v11, 2, v12
            v_mul_u32_u24 v12, 160, v12
            v_lshrrev_b32 v13, 5, v1
            v_lshl_add_u32 v12, v13, 5, v12
            v_and_b32 v8, 3, v1
            v_lshl_add_u32 v12, v8, 3, v12
            v_add_u32 v12, {PT}, v12
            v_and_b32 v8, 15, v1
            v_lshl_add_u32 v8, v11, 5, v8
            v_lshlrev_b32 v8, 4, v8
            v_lshl_add_u32 v8, v13, 10, v8
            v_cmp_gt_u32 vcc, 32, v1
            v_mov_b32 v9, {OOB}""")
        for m in range(3):
            for u in range(3):
                r = 16 + 4*(3*m+u)
                a(f"ds_read_b64_tr_b16 v[{r}:{r+1}], v12 offset:{m*2560+u*64}\nds_read_b64_tr_b16 v[{r+2}:{r+3}], v12 offset:{m*2560+u*64+1280}")
            if m == 0: a("v_cndmask_b32 v9, v9, v8, vcc")
        a(f"s_mul_i32 s13, s{sRB64}, 3\ns_mul_i32 s14, s{sCB}, 48")
        a("s_waitcnt lgkmcnt(0)")
        for m in range(3):
            a(f"""s_add_u32 s11, s13, {m}
                s_lshr_b32 s12, s11, 1
                s_add_u32 s12, s12, s14
                s_mul_i32 s12, s12, 5120
                s_and_b32 s11, s11, 1
                s_lshl_b32 s11, s11, 8
                s_add_u32 s11, s11, s12
                s_add_u32 s11, s11, {WDT}
                s_add_u32 s12, s11, 4096""")
            for u in range(3):
                r = 16 + 4*(3*m+u)
                if u < 2: a.vmem(f"buffer_store_dwordx4 v[{r}:{r+3}], v8, s[{rWS}:{rWS+3}], s11 offen offset:{2048*u} sc1", "st1")
                else:     a.vmem(f"buffer_store_dwordx4 v[{r}:{r+3}], v9, s[{rWS}:{rWS+3}], s12 offen sc1", "st1")
    def svc_poll():
        a(f"v_lshlrev_b32 v8, 3, v1\ns_lshl_b32 s79, s{sCB}, 9\ns_add_u32 s79, s79, {S1FLAG}")
        poll_issue(8, 79, 10, 2, "poll")
    def svc_check():
        a.vm_wait("poll")
        poll_cmp(10, 2)
        a("s_mov_b32 s94, 0\ns_cmp_eq_u64 vcc, 0\ns_cbranch_scc0 L_chk_no\ns_mov_b32 s94, 1")
        lds_set(F_S1, 1, 12)
        a.label("L_chk_no")
    def svc_pre(): svc_init(); a.vm.append("dma0"); a.vm.pop();
    def svc_pre2():
        svc_init()
        a.vm[-1] = "dma0"
        gate_setup()
    aux_loop({'pre': svc_pre2, 'post': svc_pretile, cfg.tpoll: svc_poll, cfg.tchk: svc_check}, gate=True)
    a("s_barrier")
    a("s_cmp_lg_u32 s94, 0\ns_cbranch_scc1 L_svc_ok")
    spin(8, 79, 10, 2)
    lds_set(F_S1, 1, 12)
    a.label("L_svc_ok")
    a(f"""v_lshlrev_b32 v8, 4, v1
        v_add_u32 v9, 4096, v8
        s_mul_i32 s11, s{sCB}, {48*5120}
        s_add_u32 s11, s11, {WDT+5*5120}""")
    for i in range(5):
        for w in range(4):
            a(f"s_add_u32 s13, s11, {(12*w+i)*5120}\ns_mov_b32 m0, {w*PRIV+i*5120}\ns_nop 0")
            for nt in range(4):
                a(f"buffer_load_dwordx4 v8, s[{rWS}:{rWS+3}], s13 offen offset:{1024*nt} sc1 lds")
            a(f"s_mov_b32 m0, {w*PRIV+i*5120+4096}\ns_nop 0")
            a(f"buffer_load_dwordx4 v9, s[{rWS}:{rWS+3}], s13 offen sc1 lds")
        if i == 0:
            a("s_waitcnt vmcnt(20)"); lds_inc(C_G, 12)
    a("s_waitcnt vmcnt(0)")
    lds_set(F_WD, 1, 12)
    a("s_waitcnt lgkmcnt(0)")
    stamp(1)
    stamp_store(10)
    a("s_endpgm")

    a.label("L_comp")
    vWa = 24; vWn = [25, 26]; vXn = [[27, 28], [29, 30]]
    vXb = [31,32,33,34]
    FS=[48,104]; ACC=160
    vCW=35; vLD=36; vCV=40
    vL=2; vL4=4; vH=[5,6,7,8]; vHS=9; vG3=[10,11,12]; vP=13; vQ=14; vO=15; vY=16; vRR=[17,18,19]; vYo=20; vF=21; vGo=22; vGt=23
    sHS=88; sHF=89; sHo=90; sWo=91; sPV=92; sRC=93; sGA=94; sW25=95; sHP=96; sYP=97; sYo=98; sNL=99
    def comp_setup():
        a(f"""v_lshrrev_b32 v158, 5, v1
        v_bfe_u32 v159, v1, 2, 2
        v_lshl_add_u32 v159, v158, 3, v159
        v_mul_u32_u24 v{vWa}, 192, v159
        v_bfe_u32 v159, v1, 4, 1
        v_lshl_add_u32 v{vWa}, v159, 5, v{vWa}
        v_and_b32 v46, 3, v1
        v_lshl_add_u32 v{vWa}, v46, 3, v{vWa}
        v_and_b32 v46, 31, v1
        v_lshlrev_b32 v{vF}, 2, v46
        v_bfe_u32 v47, v1, 1, 3
        v_xor_b32 v47, v47, v158
        v_lshlrev_b32 v47, 4, v47
        v_lshl_add_u32 v47, v46, 7, v47
        s_lshl_b32 s11, s{sWAVE}, 12
        s_add_u32 s11, s11, {XB}
        v_add_u32 v{vXb[0]}, s11, v47
        v_xor_b32 v{vXb[1]}, 32, v{vXb[0]}
        v_xor_b32 v{vXb[2]}, 64, v{vXb[0]}
        v_xor_b32 v{vXb[3]}, 0x60, v{vXb[0]}
        v_and_b32 v46, 15, v1
        v_lshlrev_b32 v{vGo}, 2, v46
        v_lshlrev_b32 v{vHS}, 4, v46
        v_lshl_add_u32 v{vHS}, v159, 10, v{vHS}
        v_lshl_add_u32 v{vHS}, v158, 9, v{vHS}
        v_lshlrev_b32 v{vL}, 4, v1
        v_add_u32 v{vL4}, 4096, v{vL}
        s_mul_i32 s{sPV}, s{sWAVE}, {PRIV}
        s_mul_i32 s{sW25}, s{sWAVE}, 2560
        v_add_u32 v{vP}, s{sPV}, v{vL}
        v_mul_u32_u24 v47, 160, v46
        v_lshrrev_b32 v134, 4, v1
        v_lshl_add_u32 v47, v134, 3, v47
        v_add_u32 v{vO}, s{sPV}, v47
        s_add_u32 s11, s{sW25}, {QT}
        v_add_u32 v{vQ}, s11, v47
        v_lshrrev_b32 v47, 2, v1
        v_lshlrev_b32 v47, 5, v47
        v_and_b32 v134, 3, v1
        v_lshl_add_u32 v47, v134, 3, v47
        s_add_u32 s11, s{sW25}, {YT}
        v_add_u32 v{vY}, s11, v47
        v_lshrrev_b32 v47, 1, v1
        v_and_b32 v134, 1, v1
        v_lshlrev_b32 v134, 4, v134
        v_lshl_add_u32 v{vYo}, v47, 12, v134
        s_lshr_b32 s11, s{sWAVE}, 1
        s_lshl1_add_u32 s11, s{sRB128}, s11
        s_mul_i32 s12, s11, {48*4096}
        s_mul_i32 s13, s{sFB}, {3*4096}
        s_add_u32 s12, s12, s13
        s_and_b32 s13, s{sWAVE}, 1
        s_lshl_b32 s14, s13, 11
        s_add_u32 s12, s12, s14
        s_add_u32 s{sHS}, s12, {HT}
        s_lshl_b32 s11, s11, 7
        s_lshl3_add_u32 s11, s{sFB}, s11
        s_lshl2_add_u32 s11, s13, s11
        s_add_u32 s{sHF}, s11, {HFLAG}
        s_mov_b32 s{sNL}, 0xbfb8aa3b
        s_mul_i32 s11, s{sWAVE}, 12
        s_mul_i32 s12, s{sCB}, 48
        s_add_u32 s12, s12, s11
        s_mul_i32 s{sWo}, s12, 5120
        s_add_u32 s{sWo}, s{sWo}, {WDT}
        s_mul_i32 s12, s{sRB64}, 48
        s_add_u32 s12, s12, s11
        s_lshl_b32 s{sHo}, s12, 12
        s_add_u32 s{sHo}, s{sHo}, {HT}
        s_lshl2_add_u32 s11, s{sRB64}, s{sWAVE}
        s_mul_i32 s{sRC}, s11, {16*1280}
        s_mul_i32 s12, s{sCB}, 160
        s_add_u32 s{sRC}, s{sRC}, s12
        s_lshl_b32 s{sGA}, s11, 6
        s_add_u32 s{sGA}, s{sGA}, {GATE}
        s_lshl_b32 s{sYo}, s11, 5
        s_mul_i32 s12, s{sCB}, {80*4096}
        s_add_u32 s{sYo}, s{sYo}, s12
        s_add_u32 s{sYo}, s{sYo}, {YTW}
        s_lshl_b32 s{sHP}, s{sRB64}, 7
        s_add_u32 s{sHP}, s{sHP}, {HFLAG}
        s_mul_i32 s{sYP}, s{sCB}, 320
        s_add_u32 s{sYP}, s{sYP}, {YFLAG}""")
        for m in range(4):
            a(f"s_add_u32 s11, s{sWAVE}, {m}\ns_and_b32 s11, s11, 3\ns_lshl_b32 s12, s11, 10\nv_add_u32 v{vH[m]}, s12, v{vL}")
            if m: a(f"s_sub_u32 s11, s{sWAVE}, {m}\ns_and_b32 s11, s11, 3\ns_mul_i32 s11, s11, {PRIV}\nv_add_u32 v{vRR[m-1]}, s11, v{vL}")
        for n in range(3):
            a(f"""v_add_u32 v158, {64*n}, v1
            v_mul_u32_u24 v159, 6554, v158
            v_lshrrev_b32 v159, 16, v159
            v_mul_u32_u24 v46, 10, v159
            v_sub_u32 v46, v158, v46
            v_lshlrev_b32 v46, 4, v46
            v_mul_u32_u24 v159, 1280, v159
            v_add_u32 v{vG3[n]}, v159, v46""")
        a(f"v_cmp_gt_u32 vcc, 32, v1\nv_mov_b32 v158, {OOB}\ns_nop 0\nv_cndmask_b32 v{vG3[2]}, v158, v{vG3[2]}, vcc")
    a("s_waitcnt lgkmcnt(0)")
    stamp(8)
    a(f"s_load_dword s{sTAG}, s[{pWS}:{pWS+1}], {EPOCH}")
    a(f"s_cmp_eq_u32 s{sWAVE}, 3\ns_cbranch_scc1 L_nos1")
    a.vm_reset()
    srd(rM1, pK, 2621440); srd(rM2, pV, 2621440); srd(rM3, pSH, 5120)
    a(f"""s_lshl_b32 s11, s{sWAVE}, 6
        v_add_u32 v158, s11, v1
        v_mul_u32_u24 v159, 3277, v158
        v_lshrrev_b32 v159, 16, v159
        v_mul_u32_u24 v46, 20, v159
        v_sub_u32 v46, v158, v46
        s_mul_i32 s11, s{sRB64}, 81920
        s_mul_i32 s12, s{sCB}, 160
        s_add_u32 s11, s11, s12
        v_mul_u32_u24 v{vK0}, 10240, v159
        v_lshl_add_u32 v{vK0}, v46, 3, v{vK0}
        v_add_u32 v{vK0}, s11, v{vK0}
        s_lshl_b32 s12, s12, 2
        v_lshlrev_b32 v{vSh}, 5, v46
        v_add_u32 v{vSh}, s12, v{vSh}
        v_cmp_gt_u32 vcc, 160, v158
        v_mov_b32 v47, {OOB}
        v_mul_u32_u24 v{vT1}, 576, v46
        v_cndmask_b32 v{vK0}, v47, v{vK0}, vcc
        v_subrev_u32 v{vKh}, 3840, v{vK0}
        v_add_u32 v{vK1}, 5120, v{vK0}""")
    a.vmem(f"buffer_load_dwordx4 v[{vSw}:{vSw+3}], v{vSh}, s[{rM3}:{rM3+3}], 0 offen", "sw")
    a.vmem(f"buffer_load_dwordx4 v[{vSw+4}:{vSw+7}], v{vSh}, s[{rM3}:{rM3+3}], 0 offen offset:16", "sw")
    for r in range(11):
        base, off = (vKh, r*1280) if r < 3 else ((vK0, (r-3)*1280) if r < 7 else (vK1, (r-7)*1280))
        a.vmem(f"buffer_load_dwordx2 v[{vK+2*r}:{vK+2*r+1}], v{base}, s[{rM1}:{rM1+3}], 0 offen offset:{off}", f"k{r}")
    for r in range(8):
        base, off = (vK0, r*1280) if r < 4 else (vK1, (r-4)*1280)
        a.vmem(f"buffer_load_dwordx2 v[{vV+2*r}:{vV+2*r+1}], v{base}, s[{rM2}:{rM2+3}], 0 offen offset:{off}", f"v{r}")
    a(f"""v_lshlrev_b32 v159, 4, v159
        v_sub_u32 v{vT1}, v{vT1}, v159
        v_add_u32 v{vT1}, {T1+112}, v{vT1}
        v_mov_b32 v47, {DUMMY}
        v_cndmask_b32 v{vT1}, v47, v{vT1}, vcc""")
    comp_setup()
    for i in range(96): a(f"v_mov_b32 v{ACC+i}, 0")
    stamp(15)
    a.vm_wait("sw")
    for p in range(2):
        for cc in range(2):
            c = 2*p+cc
            unpack(64+8*p+0+cc, 64+8*p+2+cc, vSw+2*c); unpack(64+8*p+4+cc, 64+8*p+6+cc, vSw+2*c+1)
    for r in range(11):
        a.vm_wait(f"k{r}")
        for p in range(2): unpack(80+22*p+2*r, 80+22*p+2*r+1, vK+2*r+p)
        if r >= 3:
            rr = r - 3
            for p in range(2):
                A = 80+22*p+2*rr; W = 64+8*p
                a(f"v_pk_mul_f32 v[{A}:{A+1}], v[{A}:{A+1}], v[{W+6}:{W+7}]")
                for jj in (2,1,0):
                    kr = 80+22*p+2*(rr+3-jj)
                    a(f"v_pk_fma_f32 v[{A}:{A+1}], v[{kr}:{kr+1}], v[{W+2*jj}:{W+2*jj+1}], v[{A}:{A+1}]")
    stamp(11)
    for r in range(8):
        a.vm_wait(f"v{r}")
        for p in range(2):
            A = 80+22*p+2*r
            unpack(124, 125, vV+2*r+p)
            a(f"v_pk_mul_f32 v[{A}:{A+1}], v[{A}:{A+1}], v[124:125]")
    for p in range(2):
        for cc in range(2):
            O = 136 + 8*p + 4*cc
            for m in range(4):
                a(f"v_cvt_pk_bf16_f32 v{O+m}, v{80+22*p+2*(7-2*m)+cc}, v{80+22*p+2*(6-2*m)+cc}")
            a(f"ds_write_b128 v{vT1}, v[{O}:{O+3}] offset:{(2*p+cc)*144}")
    a("s_waitcnt lgkmcnt(0)\ns_branch L_s1done")
    a.label("L_nos1")
    srd(rM1, pWD, 1966080)
    a(f"""s_mul_i32 s11, s{sRB64}, {48*1280}
        s_mul_i32 s12, s{sCB}, 160
        s_add_u32 s11, s11, s12
        s_movk_i32 s12, 1280
        s_mov_b32 m0, {PT}""")
    for n in range(8):
        a(f"""v_add_u32 v126, {64*n}, v1
            v_mul_u32_u24 v127, 6554, v126
            v_lshrrev_b32 v127, 16, v127
            v_mul_u32_u24 v128, 10, v127
            v_sub_u32 v128, v126, v128
            v_lshlrev_b32 v128, 4, v128
            v_mad_u32_u24 v128, v127, s12, v128""")
        if n == 7: a("s_mov_b32 exec_hi, 0")
        a(f"buffer_load_dwordx4 v128, s[{rM1}:{rM1+3}], s11 offen lds")
        if n < 7: a(f"s_add_u32 m0, m0, 1024")
    a("s_mov_b32 exec_hi, -1")
    comp_setup()
    for i in range(96): a(f"v_mov_b32 v{ACC+i}, 0")
    stamp(15); stamp(11)
    a.label("L_s1done")
    stamp(14)
    srd(rWS, pWS, WS_SIZE)
    srd(rX, pQ, 2621440)
    def g1_reads(st, w, x0, x1):
        b = FS[st]; out = []
        for kk in range(2):
            out.append(f"ds_read_b128 v[{b+48+4*kk}:{b+51+4*kk}], v{x0 if kk==0 else x1}")
            for ft in range(3):
                for mat in range(2):
                    r = b + ((kk*3+ft)*2+mat)*4
                    o = mat*6144 + kk*3072 + ft*64
                    out.append(f"ds_read_b64_tr_b16 v[{r}:{r+1}], v{w} offset:{o}")
                    out.append(f"ds_read_b64_tr_b16 v[{r+2}:{r+3}], v{w} offset:{o+768}")
        return out
    def g1_mfmas(st):
        b = FS[st]; out = []
        for kk in range(2):
            for ft in range(3):
                for mat in range(2):
                    r = b + ((kk*3+ft)*2+mat)*4
                    c = ACC + (mat*3+ft)*16
                    out.append(f"v_mfma_f32_32x32x16_bf16 v[{c}:{c+15}], v[{r}:{r+3}], v[{b+48+4*kk}:{b+51+4*kk}], v[{c}:{c+15}]")
        return out
    a("s_waitcnt vmcnt(0)")
    mk_tag()
    if cfg.cprio: a(f"s_setprio {cfg.cprio}")
    a("s_barrier")
    stamp(1)
    for l in g1_reads(0, vWa, vXb[0], vXb[1]): a(l)
    sSB=68; sIT=69; sXS=70; sNEED=71; sLND=72
    a(f"""s_mov_b32 s{sSB}, {WSL}
        s_mov_b32 s{sXS}, 0
        s_mov_b32 s{sIT}, {NST//2}
        s_mov_b32 m0, 16
        v_add_u32 v{vWn[0]}, s{sSB}, v{vWa}
        v_mov_b32 v{vXn[0][0]}, v{vXb[2]}
        v_mov_b32 v{vXn[0][1]}, v{vXb[3]}
        s_waitcnt lgkmcnt(0)""")
    a.label("L_g1")
    def g1_addr(st):
        out = [f"s_add_u32 s{sSB}, s{sSB}, {WSL}", f"s_cmp_eq_u32 s{sSB}, {R*WSL}", f"s_cselect_b32 s{sSB}, 0, s{sSB}", f"v_add_u32 v{vWn[st]}, s{sSB}, v{vWa}"]
        if st == 1: out += [f"s_add_u32 s{sXS}, s{sXS}, {XSL}", f"s_and_b32 s{sXS}, s{sXS}, {NX*XSL-1}"]
        par = 1 - st
        out += [f"v_add_u32 v{vXn[st][0]}, s{sXS}, v{vXb[2*par]}", f"v_add_u32 v{vXn[st][1]}, s{sXS}, v{vXb[2*par+1]}"]
        return out
    need = []
    for kk in range(2):
        for ft in range(3):
            for mat in range(2): need.append(kk*13 + 1 + (ft*2+mat)*2 + 1)
    for st in range(2):
        ops = g1_reads(1-st, vWn[st], vXn[st][0], vXn[st][1]); mf = g1_mfmas(st)
        ad = g1_addr(1-st)
        k = 0; covered = -1
        for i_, m in enumerate(mf):
            nd = need[i_]
            if nd > covered:
                n = (25 - nd) + k
                if n <= 15: a(f"s_waitcnt lgkmcnt({n})"); covered = nd
                else: a("s_waitcnt lgkmcnt(15)"); covered = 25 + k - 15
            a(m)
            if i_ == 0:
                stamp(0, 70)
                if cfg.stamps == 2: a("s_add_u32 m0, m0, 1")
                a("s_barrier")
            for _ in range(cfg.g1spread[i_]):
                if k < len(ops): a(ops[k]); k += 1
            if i_ == 10:
                for l in ad[:3]: a(l)
            if i_ == 11:
                for l in ad[3:]: a(l)
        assert k == len(ops)
    a(f"s_sub_u32 s{sIT}, s{sIT}, 1\ns_cmp_lg_u32 s{sIT}, 0\ns_cbranch_scc1 L_g1")
    stamp(2); rstamp(61)
    a("s_setprio 3\ns_waitcnt lgkmcnt(0)\ns_barrier")
    WS_=[48+20*i for i in range(5)]; AC2=176
    HSL=[[24,28,32,36],[148,152,156,160],[40,44,164,168]]
    vT=172
    a.vm_reset()
    def ld_wd(b, tag):
        for nt in range(5):
            a.vmem(f"buffer_load_dwordx4 v[{b+4*nt}:{b+4*nt+3}], v{vL if nt<4 else vL4}, s[{rWS}:{rWS+3}], s{sWo} offen offset:{1024*(nt&3)} sc1", tag)
        a(f"s_add_u32 s{sWo}, s{sWo}, 5120")
    def ld_h(hs, tag):
        for m in range(4):
            a.vmem(f"buffer_load_dwordx4 v[{hs[m]}:{hs[m]+3}], v{vH[m]}, s[{rWS}:{rWS+3}], s{sHo} offen sc1", tag)
        a(f"s_add_u32 s{sHo}, s{sHo}, 4096")
    wq = 0
    for ft in range(3):
        G = ACC + ft*16; U = ACC + (3+ft)*16; O = 24 + 8*ft
        for grp in range(2):
            es = [8*grp + i for i in range(8)]
            for e in es: a(f"v_mul_f32 v{G+e}, s{sNL}, v{G+e}")
            for e in es: a(f"v_exp_f32 v{G+e}, v{G+e}")
            for e in es: a(f"v_add_f32 v{G+e}, 1.0, v{G+e}")
            for e in es: a(f"v_rcp_f32 v{G+e}, v{G+e}")
            for e in es: a(f"v_mul_f32 v{G+e}, v{G+e}, v{U+e}")
            for i in range(4): a(f"v_cvt_pk_bf16_f32 v{O+4*grp+i}, v{G+8*grp+2*i}, v{G+8*grp+2*i+1}")
            if wq < cfg.wepi and 2*ft+grp in (1, 3):
                if wq == 0: lds_spin(F_S1, 1, 148)
                ld_wd(WS_[wq], f"w{wq}"); wq += 1
        if ft < 2: stamp(12+ft)
    for ft in range(3):
        O = 24 + 8*ft
        for grp in range(2):
            a.vmem(f"buffer_store_dwordx4 v[{O+4*grp}:{O+4*grp+3}], v{vHS}, s[{rWS}:{rWS+3}], s{sHS} offen offset:{256*grp} sc1", "hst")
        if ft < 2: a(f"s_add_u32 s{sHS}, s{sHS}, 4096")
    stamp(3)
    for i in range(80): a(f"v_mov_b32 v{AC2+i}, 0")
    lds_spin(C_G, 1, 148)
    a.vm_wait("hst")
    gflag(sHF, 148)
    stamp(7); rstamp(62)
    lds_inc(C_H, 150)
    lds_spin(C_H, 4, 150)
    if cfg.wepi == 0: lds_spin(F_S1, 1, 150)
    for i in range(cfg.wepi, 5): ld_wd(WS_[i], f"w{i}")
    a(f"s_add_u32 s{sWo}, s{sWo}, {5*5120}")
    for n in range(3):
        a(f"s_add_u32 m0, s{sW25}, {QT+1024*n}\n" + ("s_mov_b32 exec_hi, 0" if n == 2 else "s_nop 0"))
        a.vmem(f"buffer_load_dwordx4 v{vG3[n]}, s[{rX}:{rX+3}], s{sRC} offen lds", "q")
    a("s_mov_b32 exec_hi, -1")
    spin(vF, sHP, vT)
    stamp(4)
    a.vm_reset()
    for s_ in range(3): ld_h(HSL[s_], f"h{s_}")
    a.vmem(f"buffer_load_dword v{vGt}, v{vGo}, s[{rWS}:{rWS+3}], s{sGA} offen sc1", "gate")
    a(f"v_min_u32 v{vF}, 39, v1\nv_lshlrev_b32 v{vF}, 3, v{vF}")
    wslot = {s_: WS_[s_] for s_ in range(5)}
    wslot.update({5: WS_[0], 6: WS_[1], 7: WS_[0], 8: WS_[1], 9: WS_[0], 10: WS_[2], 11: WS_[3]})
    def rd_wd(s_):
        b = wslot[s_]
        return [f"ds_read_b128 v[{b+4*nt}:{b+4*nt+3}], v{vP} offset:{(s_-5)*5120+nt*1024}" for nt in range(5)]
    Yr = WS_[4]; Qr = WS_[4] + 10; GA = WS_[0]; TT = WS_[1]
    ga_code = []
    for i in range(10):
        t = TT + 4*(i & 3)
        ga_code += [f"v_lshlrev_b32 v{t}, 16, v{Yr+i}", f"v_and_b32 v{t+1}, s{sMASK}, v{Yr+i}",
                    f"v_lshlrev_b32 v{t+2}, 16, v{Qr+i}", f"v_and_b32 v{t+3}, s{sMASK}, v{Qr+i}",
                    f"v_mul_f32 v{t}, v{t}, v{t+2}", f"v_mul_f32 v{t+1}, v{t+1}, v{t+3}",
                    f"v_mul_f32 v{GA+2*i}, v{t}, v{vT}", f"v_mul_f32 v{GA+2*i+1}, v{t+1}, v{vT}"]
    for step in range(12):
        hs = HSL[step % 3]; wb = wslot[step]
        a.vm_wait(f"h{step}")
        if step >= 10: a.vm_wait(f"w{step}")
        if 5 <= step <= 9: a("s_waitcnt lgkmcnt(0)")
        stamp(40+step)
        if step == 4: lds_spin(F_WD, 1, vT)
        fill = rd_wd(step+1) if 5 <= step+1 <= 9 else []
        per = 1
        if step == 10:
            a.vm_wait("y")
            for nt in range(5): a(f"ds_read_b64_tr_b16 v[{Yr+2*nt}:{Yr+2*nt+1}], v{vY} offset:{nt*512}")
            for nt in range(5): a(f"ds_read_b64 v[{Qr+2*nt}:{Qr+2*nt+1}], v{vQ} offset:{nt*32}")
            fill = [f"v_lshlrev_b32 v{vT}, 16, v{vGt}", f"v_and_b32 v{vT+1}, s{sMASK}, v{vGt}"] + ["s_nop 0"]*6 + ["s_waitcnt lgkmcnt(0)"] + ga_code[:31]
            per = 2
        if step == 11: fill = ga_code[31:]; per = 3
        i = 0
        for m in range(4):
            for nt in range(5):
                c = AC2 + (m*5+nt)*4
                a(f"v_mfma_f32_16x16x32_bf16 v[{c}:{c+3}], v[{wb+4*nt}:{wb+4*nt+3}], v[{hs[m]}:{hs[m]+3}], v[{c}:{c+3}]")
                for _ in range(per):
                    if i < len(fill): a(fill[i]); i += 1
        assert i == len(fill)
        if step + 3 < 12: ld_h(hs, f"h{step+3}")
        if step in (2, 3): ld_wd(wslot[step+8], f"w{step+8}")
        if step == cfg.ystep - 2: poll_issue(vF, sYP, vT, 2, "ypoll")
        if step == cfg.ystep:
            spin(vF, sYP, vT, 2, first_wait=wait_tag("ypoll"))
            stamp(9)
            for n in range(3):
                a(f"s_add_u32 m0, s{sW25}, {YT+1024*n}\n" + ("s_mov_b32 exec_hi, 0" if n == 2 else "s_nop 0"))
                a.vmem(f"buffer_load_dwordx4 v{vYo}, s[{rWS}:{rWS+3}], s{sYo} offen sc1 lds", "y")
                if n < 2: a(f"s_add_u32 s{sYo}, s{sYo}, {32*4096}")
            a("s_mov_b32 exec_hi, -1")
    stamp(5)
    srd(rM1, pOUT, 2621440)
    a("s_nop 4")
    for m in range(1, 4):
        for nt in range(5):
            c = AC2 + (m*5+nt)*4
            a(f"ds_write_b128 v{vP}, v[{c}:{c+3}] offset:{((m-1)*5+nt)*1024}")
    a("s_waitcnt lgkmcnt(0)\ns_barrier")
    P=88
    for nt in range(5):
        for sl in range(3):
            r = P + (nt*3+sl)*4
            a(f"ds_read_b128 v[{r}:{r+3}], v{vRR[sl]} offset:{(sl*5+nt)*1024}")
    a(f"v_mov_b32 v{vT}, v{vT+1}")
    for nt in range(5):
        c = AC2 + nt*4
        a(f"s_waitcnt lgkmcnt({12-3*nt+nt})")
        for sl in range(3):
            r = P + (nt*3+sl)*4
            a(f"v_pk_add_f32 v[{c}:{c+1}], v[{c}:{c+1}], v[{r}:{r+1}]\nv_pk_add_f32 v[{c+2}:{c+3}], v[{c+2}:{c+3}], v[{r+2}:{r+3}]")
        for h in range(2):
            x = c + 2*h
            a(f"v_pk_fma_f32 v[{x}:{x+1}], v[{x}:{x+1}], v[{vT}:{vT+1}], v[{GA+4*nt+2*h}:{GA+4*nt+2*h+1}]")
        a(f"v_cvt_pk_bf16_f32 v{c}, v{c}, v{c+1}\nv_cvt_pk_bf16_f32 v{c+1}, v{c+2}, v{c+3}")
        a(f"ds_write_b64 v{vO}, v[{c}:{c+1}] offset:{OTO+nt*32}")
    a("s_waitcnt lgkmcnt(0)")
    for n in range(3): a(f"ds_read_b128 v[{P+4*n}:{P+4*n+3}], v{vP} offset:{OTO+1024*n}")
    for n in range(3):
        a(f"s_waitcnt lgkmcnt({2-n})\nbuffer_store_dwordx4 v[{P+4*n}:{P+4*n+3}], v{vG3[n]}, s[{rM1}:{rM1+3}], s{sRC} offen")
    stamp(6); rstamp(63)
    stamp_store(26)
    a(f"s_or_b32 s11, s2, s{sWAVE}\ns_cmp_lg_u32 s11, 0\ns_cbranch_scc1 L_end")
    a(f"s_mov_b32 s12, {cfg.spin_max}\ns_movk_i32 s11, {S1FLAG}")
    a.label("L_ep")
    for i in range(4): a(f"buffer_load_dwordx4 v[{24+4*i}:{27+4*i}], v{vL}, s[{rWS}:{rWS+3}], s11 offen offset:{1024*i} sc1")
    a("s_waitcnt vmcnt(0)")
    for i in range(16): a(f"v_xor_b32 v{24+i}, s{sTAG}, v{24+i}")
    for i in range(1, 16): a(f"v_or_b32 v24, v24, v{24+i}")
    a(f"""v_cmp_ne_u32 vcc, 0, v24
        s_sub_u32 s12, s12, 1
        s_cselect_b64 vcc, 0, vcc
        s_cmp_eq_u64 vcc, 0
        s_cbranch_scc0 L_ep
        v_mov_b32 v18, s{sTAG}
        v_mov_b32 v19, 0
        s_mov_b64 exec, 1
        buffer_store_dword v18, v19, s[{rWS}:{rWS+3}], 0 offen sc1""")
    a.label("L_end")
    a("s_endpgm")
    a.label("L_code_end")
    body = a.text()
    ref = open(f"cdna_kernels/{NAME}.s.ref").read()
    head = [l for l in ref.split("\n") if l.startswith(";") and "@launch" not in l]
    out = "\n".join(head) + f"\n; @launch grid=(256,1,1) block=(512,1,1) lds={LDS_BYTES}\n"
    out += f""".amdgcn_target "amdgcn-amd-amdhsa--gfx950"
.text
.globl {NAME}_kernel
.p2align 8
.type {NAME}_kernel,@function
{NAME}_kernel:
{body}.section .rodata,"a"
.p2align 6
.amdhsa_kernel {NAME}_kernel
  .amdhsa_next_free_vgpr 256
  .amdhsa_next_free_sgpr 102
  .amdhsa_accum_offset 256
  .amdhsa_group_segment_fixed_size 0
  .amdhsa_kernarg_size 112
  .amdhsa_user_sgpr_count 2
  .amdhsa_user_sgpr_kernarg_segment_ptr 1
  .amdhsa_system_sgpr_workgroup_id_x 1
.end_amdhsa_kernel
"""
    return out, body

if __name__ == "__main__":
    outp = sys.argv[1] if len(sys.argv) > 1 else "k.s"
    for kv in sys.argv[2:]:
        k, v = kv.split("="); setattr(cfg, k, eval(v))
    out, body = gen(cfg)
    errs = check_hazards(body)
    for e in errs: print("HAZARD", e)
    open(outp, "w").write(out)
    print("wrote", outp, len(out), "bytes;", len(errs), "hazards")
```

```python
import sys, re
from asmlib import *
NAME = "gated_mix__ssm_conv_h3__glu_gated_glu__prompt"
EPOCH=0; S1FLAG=0x1000; HFLAG=0x2000; YFLAG=0x6000; GATE=0x8000; STAMP=0x10000
KVR=0x100000; WDT=0x400000; HT=0x600000; YTW=0xC00000; WS_SIZE=0x1000000
OOB = 0x80000000

class Cfg:
    stamps = 0
    spin_max = 1 << 16
    psleep = 6
    tflag = 4
    tpoll = 12
    tchk = 15
    tconv = 16
    pre_n = 4
    hrot = False
    bla = 5
    x_nobar = False
    x_nodma = False
    x_noread = False
    ystep = 8
    wepi = 0
    wmid = 5
    cper = 1
    wsoff = 0
    ost = ''
    vprio = 0
    eprio = 3
    g1spread = [2,3,2,3,2,3,2,3,2,2,2,0]
    cprio = 1
    la = 3
    lp = 2
    lsleep = 1
    aprio = 2
cfg = Cfg()

def gen(cfg):
    R = 6; WSL = 12288; XB = R*WSL; XSL = 16384; NX = 4
    CB = XB + 3*XSL
    HE=0; HO=4160; XR=8320; CSZ=12928
    T1 = XB + 4*XSL; PT = T1 + 11520; DUMMY = PT + 8192
    CTRL = CB + 3*CSZ + 128
    LAND=CTRL; CONS=CTRL+16; F_S1=CTRL+32; F_WD=CTRL+36; C_H=CTRL+40; C_G=CTRL+44; CDUM=CTRL+64; GW=CTRL+384
    LDS_BYTES = 163840
    assert GW + 1280 + 256 <= LDS_BYTES and DUMMY + 600 <= CTRL
    PRIV = 25600; QT = 102400; YT = 112640; OTO = 15360
    a = Asm()
    NST = 20
    sWAVE=3; sX=4; sJ=5; sRB128=6; sFB=7; sRB64=8; sCB=9; sTAG=10
    pQ,pK,pV,pSH,pSK,pSD,pBX,pWG,pWU,pWD,pGW,pOUT,pDBG,pWS = [16+2*i for i in range(14)]
    rWS=44; rX=48; rW=52; rM1=56; rM2=60; rM3=64; rSK=84
    sMASK=101
    sRot = sJ if cfg.hrot else 100
    def srd(r, p, size):
        a(f"s_mov_b64 s[{r}:{r+1}], s[{p}:{p+1}]\ns_mov_b32 s{r+2}, {size}\ns_mov_b32 s{r+3}, 0x20000")
    def stamp(k, sreg=None):
        if cfg.stamps == 2 or (cfg.stamps == 3 and sreg is None and k < 16):
            a(f"s_memtime s[80:81]\ns_waitcnt lgkmcnt(0)\nv_writelane_b32 v3, s80, {k if sreg is None else 'm0'}")
    def rstamp(k):
        if cfg.stamps:
            a(f"s_memrealtime s[80:81]\ns_waitcnt lgkmcnt(0)\nv_writelane_b32 v3, s80, {k}")
    def stamp_store(vtmp):
        if not cfg.stamps: return
        a(f"s_lshl_b32 s11, s2, 3\ns_add_u32 s11, s11, s{sWAVE}\ns_lshl_b32 s11, s11, 8\ns_add_u32 s11, s11, {STAMP}")
        a(f"v_lshlrev_b32 v{vtmp}, 2, v1\nbuffer_store_dword v3, v{vtmp}, s[{rWS}:{rWS+3}], s11 offen\ns_waitcnt vmcnt(0)")
    lab = [0]
    def newlab(p): lab[0] += 1; return f"L_{p}{lab[0]}"
    def poll_issue(voff, soff, vt, n, tag=None):
        op = {1: "dword", 2: "dwordx2"}[n]
        a.vmem(f"buffer_load_{op} {vr(vt, n)}, v{voff}, s[{rWS}:{rWS+3}], s{soff} offen sc1", tag)
    def poll_cmp(vt, n):
        if n == 2: a(f"v_xor_b32 v{vt}, s{sTAG}, v{vt}\nv_xor_b32 v{vt+1}, s{sTAG}, v{vt+1}\nv_or_b32 v{vt}, v{vt}, v{vt+1}\nv_cmp_ne_u32 vcc, 0, v{vt}")
        else: a(f"v_cmp_ne_u32 vcc, s{sTAG}, v{vt}")
    def spin(voff, soff, vt, n=1, first_wait=None):
        L = newlab("spin")
        a(f"s_mov_b32 s12, {cfg.spin_max}")
        if first_wait is not None:
            first_wait(); a(f"s_branch {L}_chk")
        else:
            a(f"s_branch {L}_ld")
        a.label(L)
        a(f"s_sleep {cfg.psleep}")
        a.label(L + "_ld")
        keep = list(a.vm); poll_issue(voff, soff, vt, n); a.vm = keep
        a("s_waitcnt vmcnt(0)")
        a.label(L + "_chk")
        poll_cmp(vt, n)
        a(f"s_sub_u32 s12, s12, 1\ns_cselect_b64 vcc, 0, vcc\ns_cmp_eq_u64 vcc, 0\ns_cbranch_scc0 {L}")
    def unpack(dlo, dhi, src):
        a(f"v_lshlrev_b32 v{dlo}, 16, v{src}\nv_and_b32 v{dhi}, s{sMASK}, v{src}")
    def seq(*fs):
        def g():
            for f in fs: f()
        return g
    def wait_tag(tag): return lambda: a.vm_wait(tag)
    def mk_tag(): a(f"s_waitcnt lgkmcnt(0)\ns_mul_i32 s{sTAG}, s{sTAG}, 0x9E3779B1\ns_add_u32 s{sTAG}, s{sTAG}, 0x7F4A7C15")
    vCT = 0
    def lds_spin(off, val, vt, quad=False):
        L = newlab("ls")
        a(f"s_mov_b32 s12, {cfg.spin_max*16}")
        if cfg.lsleep: a(f"s_branch {L}_rd")
        a.label(L)
        if cfg.lsleep:
            a(f"s_sleep {cfg.lsleep}")
            a.label(L + "_rd")
        if quad:
            a(f"""ds_read_b128 v[{vt}:{vt+3}], v{vCT} offset:{off-CTRL}
                s_waitcnt lgkmcnt(0)
                v_min_u32 v{vt}, v{vt}, v{vt+1}
                v_min3_u32 v{vt}, v{vt}, v{vt+2}, v{vt+3}
                s_nop 0""")
        else:
            a(f"ds_read_b32 v{vt}, v{vCT} offset:{off-CTRL}\ns_waitcnt lgkmcnt(0)")
        a(f"""v_readfirstlane_b32 s11, v{vt}
            s_sub_u32 s12, s12, 1
            s_cselect_b32 s11, -1, s11
            s_cmp_lt_u32 s11, {val}
            s_cbranch_scc1 {L}""")
    def lds_set(off, val, vt):
        a(f"v_mov_b32 v{vt}, {val}\ns_mov_b64 exec, 1\nds_write_b32 v{vCT}, v{vt} offset:{off-CTRL}\ns_mov_b64 exec, -1")
    def lds_inc(off, vt):
        a(f"v_mov_b32 v{vt}, 1\ns_mov_b64 exec, 1\nds_add_u32 v{vCT}, v{vt} offset:{off-CTRL}\ns_mov_b64 exec, -1")
    def gflag(soff, vt):
        a(f"v_mov_b32 v{vt}, s{sTAG}\nv_mov_b32 v{vt+1}, 0\ns_mov_b64 exec, 1")
        a.vmem(f"buffer_store_dword v{vt}, v{vt+1}, s[{rWS}:{rWS+3}], s{soff} offen sc1", "flag")
        a("s_mov_b64 exec, -1")

    a("s_cmp_ge_u32 s2, 256\ns_cbranch_scc1 L_end")
    stamp(0); rstamp(60)
    a("s_load_dwordx16 s[16:31], s[0:1], 0\ns_load_dwordx8 s[32:39], s[0:1], 64\ns_load_dwordx4 s[40:43], s[0:1], 96")
    a(f"v_lshrrev_b32 v2, 6, v0\nv_and_b32 v1, 63, v0\ns_mov_b32 s{sMASK}, 0xffff0000\ns_mov_b32 s100, 0")
    a("s_getpc_b64 s[14:15]")
    a.label("L_pc")
    a("v_lshlrev_b32 v4, 7, v0\nv_min_u32 v4, L_code_end-L_pc-4, v4")
    a(f"v_readfirstlane_b32 s{sWAVE}, v2")
    a("v_cmp_gt_u32 vcc, (L_code_end-L_pc+127)/128, v0\ns_and_saveexec_b64 s[12:13], vcc\ns_cbranch_execz L_nopf")
    a("global_load_dword v135, v4, s[14:15]")
    a.label("L_nopf")
    a(f"s_mov_b64 exec, -1\nv_mov_b32 v{vCT}, {CTRL}")
    a(f"""s_and_b32 s{sX}, s2, 7
        s_lshr_b32 s{sJ}, s2, 3
        s_and_b32 s11, s{sX}, 1
        s_lshr_b32 s12, s{sX}, 1
        s_and_b32 s13, s{sJ}, 7
        s_lshl3_add_u32 s{sRB128}, s11, s13
        s_lshr_b32 s13, s{sJ}, 3
        s_lshl2_add_u32 s{sFB}, s12, s13
        s_and_b32 s13, s{sJ}, 3
        s_lshl2_add_u32 s{sCB}, s11, s13
        s_lshr_b32 s13, s{sJ}, 2
        s_lshl3_add_u32 s{sRB64}, s12, s13
        s_cmp_lt_u32 s{sWAVE}, 4
        s_cbranch_scc1 L_comp""")

    sA=68; sLW=69; sLX=70; sOW=71; sOX=72; sOX2=73
    vW0,vW1,vW2,vXe,vXo = 4,5,6,7,2
    vLA=14
    vGx=136; vGw=137; vGx2=138; vGa=140
    a(f"s_sub_u32 s{sA}, s{sWAVE}, 4")
    a("s_mov_b32 s11, 43691\ns_movk_i32 s12, 3072")
    for i, v in enumerate((vW0,vW1,vW2)):
        a(f"""v_add_u32 v8, {64*i}, v1
            v_mul_u32_u24 v9, s11, v8
            v_lshrrev_b32 v9, 19, v9
            v_mul_u32_u24 v10, 12, v9
            v_sub_u32 v8, v8, v10
            v_lshlrev_b32 v8, 4, v8
            v_mad_u32_u24 v{v}, v9, s12, v8""")
        if i: a(f"v_subrev_u32 v{v}, {1024*i}, v{v}")
    a(f"""v_lshrrev_b32 v8, 3, v1
        v_mul_u32_u24 v8, 1280, v8
        v_lshrrev_b32 v9, 4, v1
        v_xor_b32 v9, v9, v1
        v_and_b32 v9, 7, v9
        v_lshl_add_u32 v{vXe}, v9, 4, v8
        v_xor_b32 v9, 4, v9
        v_lshl_add_u32 v{vXo}, v9, 4, v8
        v_add_u32 v{vXo}, {10240-1024}, v{vXo}
        s_and_b32 s11, s{sA}, 1
        s_lshr_b32 s12, s{sA}, 1
        s_mul_i32 s{sLW}, s12, 6144
        s_mul_i32 s13, s11, 3072
        s_add_u32 s{sLW}, s{sLW}, s13
        s_lshl_b32 s{sLX}, s{sA}, 12
        s_add_u32 s{sLX}, s{sLX}, {XB}
        s_mul_i32 s{sOW}, s{sFB}, 192
        s_mul_i32 s13, s11, 49152
        s_add_u32 s{sOW}, s{sOW}, s13
        s_lshl2_add_u32 s13, s{sRB128}, s{sA}
        s_mul_i32 s{sOX}, s13, 40960
        s_add_u32 s{sOX2}, s{sOX}, {20480-2048}
        s_waitcnt lgkmcnt(0)""")
    stamp(8)
    if cfg.wsoff: a(f"s_add_u32 s{pWS}, s{pWS}, {cfg.wsoff}\ns_addc_u32 s{pWS+1}, s{pWS+1}, 0")
    a(f"s_load_dword s{sTAG}, s[{pWS}:{pWS+1}], {EPOCH}")
    a(f"s_cmp_lt_u32 s{sA}, 2\ns_cselect_b64 s[{rW}:{rW+1}], s[{pWG}:{pWG+1}], s[{pWU}:{pWU+1}]\ns_mov_b32 s{rW+2}, 1966080\ns_mov_b32 s{rW+3}, 0x20000")
    srd(rX, pQ, 2621440)
    def x_half(u, half, tag):
        a(f"s_add_u32 m0, s{sLX}, {(u % NX)*XSL}\ns_nop 0")
        so = sOX if half == 0 else sOX2
        a.vmem(f"buffer_load_dwordx4 v{vXe}, s[{rX}:{rX+3}], s{so} offen offset:{2048*half} lds", tag)
        a.vmem(f"buffer_load_dwordx4 v{vXo}, s[{rX}:{rX+3}], s{so} offen offset:{2048*half+1024} lds", tag)
        a(f"s_add_u32 s{so}, s{so}, 128")
    def dma_stage(t):
        tag = f"dma{t}"
        if t == 0: x_half(0, 0, tag)
        if t % 2 == 0: x_half(t//2, 1, tag)
        a(f"s_add_u32 m0, s{sLW}, {(t % R)*WSL}\ns_nop 0")
        for i, v in enumerate((vW0,vW1,vW2)):
            a.vmem(f"buffer_load_dwordx4 v{v}, s[{rW}:{rW+3}], s{sOW} offen offset:{1024*i} lds", tag)
        a(f"s_add_u32 s{sOW}, s{sOW}, 98304")
        if t % 2 == 1 and t + 1 < NST: x_half((t+1)//2, 0, tag + "x")
    a.vm_reset()
    dma_stage(0); dma_stage(1)
    srd(rWS, pWS, WS_SIZE)
    a(f"""s_lshl_b32 s11, s{sCB}, 5
        s_add_u32 s11, s11, s{sRB64}
        s_lshl_b32 s11, s11, 4
        s_lshl2_add_u32 s11, s{sA}, s11
        s_add_u32 s78, s11, {S1FLAG}""")
    vm_common = list(a.vm)
    a(f"s_cmp_eq_u32 s{sWAVE}, 7\ns_cbranch_scc1 L_svc")

    def gate_setup():
        a(f"""s_lshr_b32 s11, s{sFB}, 1
            s_lshl_b32 s11, s11, 4
            v_and_b32 v10, 15, v1
            v_add_u32 v10, s11, v10
            v_lshrrev_b32 v11, 4, v1
            v_lshlrev_b32 v{vGw}, 4, v11
            v_add_u32 v{vGw}, {GW}, v{vGw}
            v_bfe_u32 v12, v10, 1, 3
            v_xor_b32 v11, v11, v12
            v_lshlrev_b32 v11, 4, v11
            v_lshl_add_u32 v11, v10, 7, v11
            v_add_u32 v{vGx}, {XB}, v11
            v_xor_b32 v{vGx2}, 64, v{vGx}""")
        for i in range(4): a(f"v_mov_b32 v{vGa+i}, 0")
    def gate_rd(u):
        a(f"""ds_read_b128 v[144:147], v{vGx} offset:{(u % NX)*XSL}
            ds_read_b128 v[148:151], v{vGw} offset:{128*u}
            ds_read_b128 v[152:155], v{vGx2} offset:{(u % NX)*XSL}
            ds_read_b128 v[156:159], v{vGw} offset:{128*u+64}""")
    def gate_dot():
        a(f"""s_waitcnt lgkmcnt(0)
            v_mfma_f32_16x16x32_bf16 v[{vGa}:{vGa+3}], v[148:151], v[144:147], v[{vGa}:{vGa+3}]
            v_mfma_f32_16x16x32_bf16 v[{vGa}:{vGa+3}], v[156:159], v[152:155], v[{vGa}:{vGa+3}]""")
    def gate_fin():
        g = vGa
        a(f"""s_lshl_b32 s11, s{sRB128}, 9
            s_lshr_b32 s12, s{sFB}, 1
            s_lshl_b32 s12, s12, 6
            s_add_u32 s11, s11, s12
            s_add_u32 s11, s11, {GATE}
            s_and_b32 s12, s{sFB}, 1
            s_lshl_b32 s12, s12, 3
            s_lshl_b32 s12, 0xff, s12
            s_nop 0
            v_cvt_pk_bf16_f32 v{g}, v{g}, v{g}
            v_lshlrev_b32 v{g}, 16, v{g}
            v_mul_f32 v{g}, 0xbfb8aa3b, v{g}
            v_exp_f32 v{g}, v{g}
            s_nop 0
            v_add_f32 v{g}, 1.0, v{g}
            v_rcp_f32 v{g}, v{g}
            s_nop 0
            v_cvt_pk_bf16_f32 v{g}, v{g}, v{g}
            v_lshlrev_b32 v{g}, 16, v{g}
            v_sub_f32 v{g+1}, 1.0, v{g}
            v_cvt_pk_bf16_f32 v{g}, v{g}, v{g+1}
            v_lshlrev_b32 v{g+1}, 2, v1
            s_mov_b32 exec_lo, s12
            s_mov_b32 exec_hi, 0""")
        a.vmem(f"buffer_store_dword v{g}, v{g+1}, s[{rWS}:{rWS+3}], s11 offen sc1", "gate")
        a("s_mov_b64 exec, -1")
    def aux_loop(side, gate=False):
        if 'pre' in side: side['pre']()
        a(f"s_setprio {cfg.aprio}")
        mk_tag()
        stamp(9)
        a.vm_wait("dma0"); stamp(10)
        for t in range(2, cfg.pre_n): dma_stage(t)
        a("s_waitcnt lgkmcnt(0)\ns_barrier")
        if 'post' in side: side['post']()
        for t in range(cfg.pre_n, cfg.bla): dma_stage(t)
        if gate: gate_rd(0)
        for t in range(NST):
            if t + 1 < NST: a.vm_wait(f"dma{t+1}")
            stamp(16+t)
            if not cfg.x_nobar: a("s_barrier")
            stamp(40+t)
            if t + cfg.bla < NST and t + cfg.bla >= cfg.pre_n:
                if cfg.x_nodma: a.vm.append(f"dma{t+cfg.bla}")
                else: dma_stage(t+cfg.bla)
            if gate and t % 2 == 0: gate_dot()
            if gate and t % 2 == 1 and t + 1 < NST: gate_rd((t+1)//2)
            if t == cfg.tflag:
                a.vm_wait("st1"); gflag(78, 160)
            if gate and t == NST-2: gate_fin()
            if t in side: side[t]()

    vK=136; vV=48; vSw=126
    vKh,vK0,vK1,vSh,vT1 = 40,42,43,44,45
    def s1_store():
        a(f"""s_lshl_b32 s11, s{sA}, 6
            v_add_u32 v69, s11, v1
            v_lshrrev_b32 v67, 3, v69
            v_and_b32 v68, 7, v69
            v_lshlrev_b32 v68, 4, v68
            v_mul_u32_u24 v64, 144, v67
            s_mov_b32 s12, {T1}
            v_add3_u32 v64, v64, v68, s12
            v_lshl_add_u32 v65, v67, 12, v68
            s_mul_i32 s11, s{sCB}, {80*4096}
            s_lshl_b32 s12, s{sRB64}, 7
            s_sub_u32 s11, s11, s12
            s_add_u32 s11, s11, {KVR+1984*2}
            v_cmp_gt_u32 vcc, 64, v69
            v_mov_b32 v67, {OOB}""")
        for i in range(4):
            a(f"ds_read_b128 v[{72+4*i}:{72+4*i+3}], v64 offset:{i*24*144}")
        a("v_cndmask_b32 v66, v67, v65, vcc")
        for i in range(4):
            a(f"s_waitcnt lgkmcnt({3-i})")
            a.vmem(f"buffer_store_dwordx4 v[{72+4*i}:{72+4*i+3}], v{65 if i<3 else 66}, s[{rWS}:{rWS+3}], s11 offen sc1", "st1")
            if i < 3: a(f"s_add_u32 s11, s11, {24*4096}")
    sD=74; sCR=75; sDv=76; sVal=77
    vA=[16,17,18,19]; vB=20; vE=21
    cAcc=32; cS=[64,128]
    def conv_ids():
        a(f"""s_cmp_lt_u32 s{sRB64}, 16
            s_cselect_b32 s11, 3, 2
            s_cselect_b32 s12, 0, 16
            s_cmp_lt_u32 s{sA}, s11
            s_cselect_b32 s{sVal}, 1, 0
            s_cselect_b32 s14, s{sA}, 0
            s_mul_i32 s13, s{sRB64}, s11
            s_add_u32 s13, s13, s12
            s_mul_i32 s{sD}, s{sCB}, 80
            s_add_u32 s{sD}, s{sD}, s13
            s_add_u32 s{sD}, s{sD}, s14
            s_mul_i32 s{sCR}, s{sA}, {CSZ}
            s_add_u32 s{sCR}, s{sCR}, {CB}
            s_lshl_b32 s11, s{sD}, 1
            s_and_b32 s11, s11, 0xfffffffc
            s_load_dword s{sDv}, s[{pSD}:{pSD+1}], s11""")
        srd(rSK, pSK, 2621440)
        a(f"""v_and_b32 v10, 15, v1
            v_lshrrev_b32 v11, 4, v1
            v_and_b32 v12, 1, v1
            v_lshlrev_b32 v13, 1, v10
            v_lshl_add_u32 v13, v11, 4, v13
            v_cmp_eq_u32 vcc, 1, v12
            v_mov_b32 v8, {HO+32-32}
            v_mov_b32 v9, {HE+32-30}
            v_cndmask_b32 v8, v8, v9, vcc
            v_add3_u32 v{vA[0]}, v13, v8, s{sCR}
            v_add_u32 v{vA[1]}, 1024, v{vA[0]}
            v_add_u32 v{vA[2]}, 2048, v{vA[0]}
            v_add_u32 v{vA[3]}, 3072, v{vA[0]}
            v_lshlrev_b32 v13, 5, v10
            v_lshlrev_b32 v8, 4, v11
            v_sub_u32 v8, v8, v13
            v_add_u32 v8, {XR+4064-3584}, v8
            v_add_u32 v{vB}, s{sCR}, v8
            v_lshlrev_b32 v8, 3, v11
            v_add_u32 v8, v8, v13
            v_add_u32 v22, s{sCR}, v8
            v_sub_u32 v{vE}, {XR+4088-3584}, v8
            v_add_u32 v{vE}, s{sCR}, v{vE}
            v_lshlrev_b32 v8, 4, v1
            v_add_u32 v9, 2, v8
            v_add_u32 v23, s{sCR}, v8
            s_waitcnt lgkmcnt(0)
            s_bitcmp1_b32 s{sD}, 0
            s_cselect_b32 s12, 0, 16
            s_lshl_b32 s{sDv}, s{sDv}, s12
            s_and_b32 s{sDv}, s{sDv}, 0xffff0000""")
        for i in range(32): a(f"v_mov_b32 v{cAcc+i}, 0")
    def conv_pre():
        a(f"""s_cmp_eq_u32 s{sVal}, 0
            s_cselect_b32 s12, {OOB}, 0
            v_add_u32 v8, s12, v8
            v_add_u32 v9, s12, v9
            s_lshl_b32 s79, s{sD}, 12
            s_add_u32 m0, s{sCR}, {HE+32}
            v_mov_b32 v12, 0
            v_mov_b32 v13, 0""")
        for i in range(4): a.vmem(f"buffer_load_dwordx4 v8, s[{rSK}:{rSK+3}], s79 offen offset:{1024*i} lds", "he")
        a(f"s_add_u32 m0, s{sCR}, {HO+32}\ns_nop 0")
        for i in range(2): a.vmem(f"buffer_load_dwordx4 v9, s[{rSK}:{rSK+3}], s79 offen offset:{1024*i} lds", "he")
    def conv_pre2():
        for i in range(2, 4): a.vmem(f"buffer_load_dwordx4 v9, s[{rSK}:{rSK+3}], s79 offen offset:{1024*i} lds", "he")
        a(f"""v_lshlrev_b32 v10, 3, v1
            v_add_u32 v10, s{sCR}, v10
            ds_write_b64 v10, v[12:13] offset:{XR+4096}
            v_and_b32 v11, 3, v1
            v_lshlrev_b32 v11, 3, v11
            v_add_u32 v11, s{sCR}, v11
            ds_write_b64 v11, v[12:13] offset:{HE}
            ds_write_b64 v11, v[12:13] offset:{HO}
            ds_read_b32 v152, v{vCT} offset:{F_S1-CTRL}
            s_add_u32 s79, s79, {KVR}""")
    def xr_issue():
        a(f"s_add_u32 m0, s{sCR}, {XR}\ns_nop 0")
        for i in range(4): a(f"buffer_load_dwordx4 v8, s[{rWS}:{rWS+3}], s79 offen offset:{1024*i} sc1 lds")
    def conv_xr():
        a("s_waitcnt lgkmcnt(0)\nv_readfirstlane_b32 s94, v152\ns_cmp_eq_u32 s94, 0\ns_cbranch_scc1 L_xr_skip")
        xr_issue()
        a.label("L_xr_skip")
    aux_loop({'pre': conv_ids, 'post': s1_store, cfg.tconv: conv_pre, cfg.tconv+1: conv_pre2, NST-2: conv_xr})
    a("s_barrier")
    stamp(1)
    a(f"s_setprio {cfg.vprio}")
    a(f"s_cmp_eq_u32 s{sVal}, 0\ns_cbranch_scc1 L_end")
    a("s_cmp_lg_u32 s94, 0\ns_cbranch_scc1 L_xr_done")
    lds_spin(F_S1, 1, 148)
    xr_issue()
    a.label("L_xr_done")
    a("s_waitcnt vmcnt(4)")
    a(f"""v_mov_b32 v10, s{sCR}
        ds_read_b32 v11, v10 offset:{HE+32}
        s_waitcnt lgkmcnt(0)
        v_lshlrev_b32 v11, 16, v11
        ds_write_b32 v10, v11 offset:{HO+28}
        s_waitcnt vmcnt(0)""")
    def conv_reads(st, cp):
        base = cS[st]; out = []
        def rdA(C):
            o = (C&1)*128 + cp*16
            r = base+4*C
            return [f"ds_read2_b32 v[{r}:{r+1}], v{vA[C>>1]} offset0:{o} offset1:{o+1}",
                    f"ds_read2_b32 v[{r+2}:{r+3}], v{vA[C>>1]} offset0:{o+2} offset1:{o+3}"]
        def rdB(U):
            r = base+32+4*U
            return [f"ds_read_b128 v[{r}:{r+3}], v{vB} offset:{(7-U)*512+cp*64}"]
        out += rdA(0)
        for U in range(8): out += rdB(U)
        for C in range(1,8): out += rdA(C)
        return out
    def conv_mfmas(st):
        base = cS[st]; out = []
        for C in range(8):
            for J in range(C, 8):
                U = J-C
                out.append(f"v_mfma_f32_16x16x32_bf16 v[{cAcc+4*J}:{cAcc+4*J+3}], v[{base+4*C}:{base+4*C+3}], v[{base+32+4*U}:{base+32+4*U+3}], v[{cAcc+4*J}:{cAcc+4*J+3}]")
        return out
    stamp(2)
    for l in conv_reads(0, 0): a(l)
    a("s_mov_b32 s11, 4")
    a.label("L_conv")
    for st in range(2):
        a("s_waitcnt lgkmcnt(0)")
        if st == 1:
            for v in vA + [vB]: a(f"v_add_u32 v{v}, 128, v{v}")
        rd = conv_reads(1-st, 1 if st == 0 else 0)
        mf = conv_mfmas(st)
        k = 0
        for i, m in enumerate(mf):
            a(m)
            for _ in range(cfg.cper):
                if k < len(rd): a(rd[k]); k += 1
    a("s_sub_u32 s11, s11, 1\ns_cmp_lg_u32 s11, 0\ns_cbranch_scc1 L_conv")
    stamp(3)
    a("s_setprio 3\ns_waitcnt lgkmcnt(0)")
    for J in range(8): a(f"ds_read_b64 v[{64+2*J}:{65+2*J}], v{vE} offset:{(7-J)*512}")
    a(f"s_lshl_b32 s13, s{sD}, 12\ns_add_u32 s13, s13, {YTW}\ns_lshl_b32 s14, s{sD}, 2\ns_add_u32 s14, s14, {YFLAG}")
    for J in range(8):
        A = cAcc+4*J; K = 64+2*J; T = 96
        a(f"""s_waitcnt lgkmcnt({min(15, 7-J+J)})
            v_and_b32 v{T}, s{sMASK}, v{K+1}
            v_lshlrev_b32 v{T+1}, 16, v{K+1}
            v_and_b32 v{T+2}, s{sMASK}, v{K}
            v_lshlrev_b32 v{T+3}, 16, v{K}
            v_fmac_f32 v{A}, s{sDv}, v{T}
            v_fmac_f32 v{A+1}, s{sDv}, v{T+1}
            v_fmac_f32 v{A+2}, s{sDv}, v{T+2}
            v_fmac_f32 v{A+3}, s{sDv}, v{T+3}
            v_cvt_pk_bf16_f32 v{K}, v{A}, v{A+1}
            v_cvt_pk_bf16_f32 v{K+1}, v{A+2}, v{A+3}
            ds_write_b64 v22, v[{K}:{K+1}] offset:{512*J}""")
    a("s_waitcnt lgkmcnt(0)")
    for i in range(4): a(f"ds_read_b128 v[{96+4*i}:{99+4*i}], v23 offset:{1024*i}")
    stamp(5)
    for i in range(4):
        a(f"s_waitcnt lgkmcnt({3-i})\nbuffer_store_dwordx4 v[{96+4*i}:{99+4*i}], v8, s[{rWS}:{rWS+3}], s13 offen offset:{1024*i} sc1")
    stamp(6)
    a("s_waitcnt vmcnt(0)")
    gflag(14, 12)
    stamp(4)
    stamp_store(10)
    a("s_endpgm")

    a.label("L_svc")
    a.vm = list(vm_common)
    pF=100
    def svc_init():
        srd(rM2, pGW, 1280)
        a(f"""v_mov_b32 v8, 0
            v_mov_b32 v9, 0
            v_mov_b32 v10, 0
            v_mov_b32 v11, 0
            s_mov_b64 exec, 1
            ds_write_b128 v{vCT}, v[8:11] offset:{F_S1-CTRL}
            s_mov_b64 exec, -1
            v_lshlrev_b32 v8, 4, v1
            s_mov_b32 m0, {GW}
            s_nop 0""")
        a.vmem(f"buffer_load_dwordx4 v8, s[{rM2}:{rM2+3}], 0 offen lds", "gw")
        a("s_mov_b64 exec, 0xffff")
        a.vmem(f"buffer_load_dwordx4 v8, s[{rM2}:{rM2+3}], 0 offen offset:1024 lds", "gw")
        a("s_mov_b64 exec, -1")
    def svc_pretile():
        a(f"""v_bfe_u32 v11, v1, 4, 1
            v_bfe_u32 v12, v1, 2, 2
            v_lshl_add_u32 v12, v11, 2, v12
            v_mul_u32_u24 v12, 160, v12
            v_lshrrev_b32 v13, 5, v1
            v_lshl_add_u32 v12, v13, 5, v12
            v_and_b32 v8, 3, v1
            v_lshl_add_u32 v12, v8, 3, v12
            v_add_u32 v12, {PT}, v12
            v_and_b32 v8, 15, v1
            v_lshl_add_u32 v8, v11, 5, v8
            v_lshlrev_b32 v8, 4, v8
            v_lshl_add_u32 v8, v13, 10, v8
            v_cmp_gt_u32 vcc, 32, v1
            v_mov_b32 v9, {OOB}""")
        for m in range(3):
            for u in range(3):
                r = 16 + 4*(3*m+u)
                a(f"ds_read_b64_tr_b16 v[{r}:{r+1}], v12 offset:{m*2560+u*64}\nds_read_b64_tr_b16 v[{r+2}:{r+3}], v12 offset:{m*2560+u*64+1280}")
            if m == 0: a("v_cndmask_b32 v9, v9, v8, vcc")
        a(f"s_mul_i32 s13, s{sRB64}, 3\ns_mul_i32 s14, s{sCB}, 48")
        a("s_waitcnt lgkmcnt(0)")
        for m in range(3):
            a(f"""s_add_u32 s11, s13, {m}
                s_lshr_b32 s12, s11, 1
                s_add_u32 s12, s12, s14
                s_mul_i32 s12, s12, 5120
                s_and_b32 s11, s11, 1
                s_lshl_b32 s11, s11, 8
                s_add_u32 s11, s11, s12
                s_add_u32 s11, s11, {WDT}
                s_add_u32 s12, s11, 4096""")
            for u in range(3):
                r = 16 + 4*(3*m+u)
                if u < 2: a.vmem(f"buffer_store_dwordx4 v[{r}:{r+3}], v8, s[{rWS}:{rWS+3}], s11 offen offset:{2048*u} sc1", "st1")
                else:     a.vmem(f"buffer_store_dwordx4 v[{r}:{r+3}], v9, s[{rWS}:{rWS+3}], s12 offen sc1", "st1")
    def svc_poll():
        a(f"v_lshlrev_b32 v8, 3, v1\ns_lshl_b32 s79, s{sCB}, 9\ns_add_u32 s79, s79, {S1FLAG}")
        poll_issue(8, 79, 10, 2, "poll")
    def svc_check():
        a.vm_wait("poll")
        poll_cmp(10, 2)
        a("s_mov_b32 s94, 0\ns_cmp_eq_u64 vcc, 0\ns_cbranch_scc0 L_chk_no\ns_mov_b32 s94, 1")
        lds_set(F_S1, 1, 12)
        a.label("L_chk_no")
    def svc_pre(): svc_init(); a.vm.append("dma0"); a.vm.pop();
    def svc_pre2():
        svc_init()
        a.vm[-1] = "dma0"
        gate_setup()
    aux_loop({'pre': svc_pre2, 'post': svc_pretile, cfg.tpoll: svc_poll, cfg.tchk: svc_check}, gate=True)
    a("s_barrier")
    a("s_cmp_lg_u32 s94, 0\ns_cbranch_scc1 L_svc_ok")
    spin(8, 79, 10, 2)
    lds_set(F_S1, 1, 12)
    a.label("L_svc_ok")
    a(f"""v_lshlrev_b32 v8, 4, v1
        v_add_u32 v9, 4096, v8
        s_mul_i32 s11, s{sCB}, {48*5120}
        s_add_u32 s11, s11, {WDT}""")
    for i in range(5):
        st_ = 5 + i
        a(f"s_add_u32 s12, s{sRot}, {st_ // 3}\ns_and_b32 s12, s12, 3\ns_mul_i32 s12, s12, {3*5120}\ns_add_u32 s14, s11, s12")
        for w in range(4):
            a(f"s_add_u32 s13, s14, {(12*w+(st_ % 3))*5120}\ns_mov_b32 m0, {w*PRIV+i*5120}\ns_nop 0")
            for nt in range(4):
                a(f"buffer_load_dwordx4 v8, s[{rWS}:{rWS+3}], s13 offen offset:{1024*nt} sc1 lds")
            a(f"s_mov_b32 m0, {w*PRIV+i*5120+4096}\ns_nop 0")
            a(f"buffer_load_dwordx4 v9, s[{rWS}:{rWS+3}], s13 offen sc1 lds")
        if i == 0:
            a("s_waitcnt vmcnt(20)"); lds_inc(C_G, 12)
    a("s_waitcnt vmcnt(0)")
    lds_set(F_WD, 1, 12)
    a("s_waitcnt lgkmcnt(0)")
    stamp(1)
    stamp_store(10)
    a("s_endpgm")

    a.label("L_comp")
    vWa = 24; vWn = [25, 26]; vXn = [[27, 28], [29, 30]]
    vXb = [31,32,33,34]
    FS=[48,104]; ACC=160
    vCW=35; vLD=36; vCV=40
    vL=2; vL4=4; vH=[5,6,7,8]; vHS=9; vG3=[10,11,12]; vP=13; vQ=14; vO=15; vY=16; vRR=[17,18,19]; vYo=20; vF=21; vGo=22; vGt=23; vF8=175
    sHi=[72,73,74,75]; sWi=[76,77,78,79]
    sHS=88; sHF=89; sHo=90; sWo=91; sPV=92; sRC=93; sGA=94; sW25=95; sHP=96; sYP=97; sYo=98; sNL=99
    def comp_setup():
        a(f"""v_lshrrev_b32 v158, 5, v1
        v_bfe_u32 v159, v1, 2, 2
        v_lshl_add_u32 v159, v158, 3, v159
        v_mul_u32_u24 v{vWa}, 192, v159
        v_bfe_u32 v159, v1, 4, 1
        v_lshl_add_u32 v{vWa}, v159, 5, v{vWa}
        v_and_b32 v46, 3, v1
        v_lshl_add_u32 v{vWa}, v46, 3, v{vWa}
        v_and_b32 v46, 31, v1
        v_lshlrev_b32 v{vF}, 2, v46
        v_bfe_u32 v47, v1, 1, 3
        v_xor_b32 v47, v47, v158
        v_lshlrev_b32 v47, 4, v47
        v_lshl_add_u32 v47, v46, 7, v47
        s_lshl_b32 s11, s{sWAVE}, 12
        s_add_u32 s11, s11, {XB}
        v_add_u32 v{vXb[0]}, s11, v47
        v_xor_b32 v{vXb[1]}, 32, v{vXb[0]}
        v_xor_b32 v{vXb[2]}, 64, v{vXb[0]}
        v_xor_b32 v{vXb[3]}, 0x60, v{vXb[0]}
        v_and_b32 v46, 15, v1
        v_lshlrev_b32 v{vGo}, 2, v46
        v_lshlrev_b32 v{vHS}, 4, v46
        v_lshl_add_u32 v{vHS}, v159, 10, v{vHS}
        v_lshl_add_u32 v{vHS}, v158, 9, v{vHS}
        v_lshlrev_b32 v{vL}, 4, v1
        v_add_u32 v{vL4}, 4096, v{vL}
        s_mul_i32 s{sPV}, s{sWAVE}, {PRIV}
        s_mul_i32 s{sW25}, s{sWAVE}, 2560
        v_add_u32 v{vP}, s{sPV}, v{vL}
        v_mul_u32_u24 v47, 160, v46
        v_lshrrev_b32 v134, 4, v1
        v_lshl_add_u32 v47, v134, 3, v47
        v_add_u32 v{vO}, s{sPV}, v47
        s_add_u32 s11, s{sW25}, {QT}
        v_add_u32 v{vQ}, s11, v47
        v_lshrrev_b32 v47, 2, v1
        v_lshlrev_b32 v47, 5, v47
        v_and_b32 v134, 3, v1
        v_lshl_add_u32 v47, v134, 3, v47
        s_add_u32 s11, s{sW25}, {YT}
        v_add_u32 v{vY}, s11, v47
        v_lshrrev_b32 v47, 1, v1
        v_and_b32 v134, 1, v1
        v_lshlrev_b32 v134, 4, v134
        v_lshl_add_u32 v{vYo}, v47, 12, v134
        s_lshr_b32 s11, s{sWAVE}, 1
        s_lshl1_add_u32 s11, s{sRB128}, s11
        s_mul_i32 s12, s11, {48*4096}
        s_mul_i32 s13, s{sFB}, {3*4096}
        s_add_u32 s12, s12, s13
        s_and_b32 s13, s{sWAVE}, 1
        s_lshl_b32 s14, s13, 11
        s_add_u32 s12, s12, s14
        s_add_u32 s{sHS}, s12, {HT}
        s_lshl_b32 s11, s11, 7
        s_lshl3_add_u32 s11, s{sFB}, s11
        s_lshl2_add_u32 s11, s13, s11
        s_add_u32 s{sHF}, s11, {HFLAG}
        s_mov_b32 s{sNL}, 0xbfb8aa3b
        s_mul_i32 s11, s{sWAVE}, 12
        s_mul_i32 s12, s{sCB}, 48
        s_add_u32 s12, s12, s11
        s_mul_i32 s{sWo}, s12, 5120
        s_add_u32 s{sWo}, s{sWo}, {WDT}
        s_mul_i32 s12, s{sRB64}, 48
        s_add_u32 s12, s12, s11
        s_lshl_b32 s{sHo}, s12, 12
        s_add_u32 s{sHo}, s{sHo}, {HT}
        s_lshl2_add_u32 s11, s{sRB64}, s{sWAVE}
        s_mul_i32 s{sRC}, s11, {16*1280}
        s_mul_i32 s12, s{sCB}, 160
        s_add_u32 s{sRC}, s{sRC}, s12
        s_lshl_b32 s{sGA}, s11, 6
        s_add_u32 s{sGA}, s{sGA}, {GATE}
        s_lshl_b32 s{sYo}, s11, 5
        s_mul_i32 s12, s{sCB}, {80*4096}
        s_add_u32 s{sYo}, s{sYo}, s12
        s_add_u32 s{sYo}, s{sYo}, {YTW}
        s_lshl_b32 s{sHP}, s{sRB64}, 7
        s_add_u32 s{sHP}, s{sHP}, {HFLAG}
        s_mul_i32 s{sYP}, s{sCB}, 320
        s_add_u32 s{sYP}, s{sYP}, {YFLAG}""")
        for m in range(4):
            a(f"s_add_u32 s11, s{sRot}, {m}\ns_and_b32 s11, s11, 3\ns_mul_i32 s12, s11, {3*4096}\ns_add_u32 s{sHi[m]}, s{sHo}, s12\ns_mul_i32 s12, s11, {3*5120}\ns_add_u32 s{sWi[m]}, s{sWo}, s12")
            a(f"s_add_u32 s11, s{sWAVE}, {m}\ns_and_b32 s11, s11, 3\ns_lshl_b32 s12, s11, 10\nv_add_u32 v{vH[m]}, s12, v{vL}")
            if m: a(f"s_sub_u32 s11, s{sWAVE}, {m}\ns_and_b32 s11, s11, 3\ns_mul_i32 s11, s11, {PRIV}\nv_add_u32 v{vRR[m-1]}, s11, v{vL}")
        for n in range(3):
            a(f"""v_add_u32 v158, {64*n}, v1
            v_mul_u32_u24 v159, 6554, v158
            v_lshrrev_b32 v159, 16, v159
            v_mul_u32_u24 v46, 10, v159
            v_sub_u32 v46, v158, v46
            v_lshlrev_b32 v46, 4, v46
            v_mul_u32_u24 v159, 1280, v159
            v_add_u32 v{vG3[n]}, v159, v46""")
        a(f"v_cmp_gt_u32 vcc, 32, v1\nv_mov_b32 v158, {OOB}\ns_nop 0\nv_cndmask_b32 v{vG3[2]}, v158, v{vG3[2]}, vcc")
    a("s_waitcnt lgkmcnt(0)")
    stamp(8)
    if cfg.wsoff: a(f"s_add_u32 s{pWS}, s{pWS}, {cfg.wsoff}\ns_addc_u32 s{pWS+1}, s{pWS+1}, 0")
    a(f"s_load_dword s{sTAG}, s[{pWS}:{pWS+1}], {EPOCH}")
    a(f"s_cmp_eq_u32 s{sWAVE}, 3\ns_cbranch_scc1 L_nos1")
    a.vm_reset()
    srd(rM1, pK, 2621440); srd(rM2, pV, 2621440); srd(rM3, pSH, 5120)
    a(f"""s_lshl_b32 s11, s{sWAVE}, 6
        v_add_u32 v158, s11, v1
        v_mul_u32_u24 v159, 3277, v158
        v_lshrrev_b32 v159, 16, v159
        v_mul_u32_u24 v46, 20, v159
        v_sub_u32 v46, v158, v46
        s_mul_i32 s11, s{sRB64}, 81920
        s_mul_i32 s12, s{sCB}, 160
        s_add_u32 s11, s11, s12
        v_mul_u32_u24 v{vK0}, 10240, v159
        v_lshl_add_u32 v{vK0}, v46, 3, v{vK0}
        v_add_u32 v{vK0}, s11, v{vK0}
        s_lshl_b32 s12, s12, 2
        v_lshlrev_b32 v{vSh}, 5, v46
        v_add_u32 v{vSh}, s12, v{vSh}
        v_cmp_gt_u32 vcc, 160, v158
        v_mov_b32 v47, {OOB}
        v_mul_u32_u24 v{vT1}, 576, v46
        v_cndmask_b32 v{vK0}, v47, v{vK0}, vcc
        v_subrev_u32 v{vKh}, 3840, v{vK0}
        v_add_u32 v{vK1}, 5120, v{vK0}""")
    a.vmem(f"buffer_load_dwordx4 v[{vSw}:{vSw+3}], v{vSh}, s[{rM3}:{rM3+3}], 0 offen", "sw")
    a.vmem(f"buffer_load_dwordx4 v[{vSw+4}:{vSw+7}], v{vSh}, s[{rM3}:{rM3+3}], 0 offen offset:16", "sw")
    for r in range(11):
        base, off = (vKh, r*1280) if r < 3 else ((vK0, (r-3)*1280) if r < 7 else (vK1, (r-7)*1280))
        a.vmem(f"buffer_load_dwordx2 v[{vK+2*r}:{vK+2*r+1}], v{base}, s[{rM1}:{rM1+3}], 0 offen offset:{off}", f"k{r}")
    for r in range(8):
        base, off = (vK0, r*1280) if r < 4 else (vK1, (r-4)*1280)
        a.vmem(f"buffer_load_dwordx2 v[{vV+2*r}:{vV+2*r+1}], v{base}, s[{rM2}:{rM2+3}], 0 offen offset:{off}", f"v{r}")
    a(f"""v_lshlrev_b32 v159, 4, v159
        v_sub_u32 v{vT1}, v{vT1}, v159
        v_add_u32 v{vT1}, {T1+112}, v{vT1}
        v_mov_b32 v47, {DUMMY}
        v_cndmask_b32 v{vT1}, v47, v{vT1}, vcc""")
    comp_setup()
    for i in range(96): a(f"v_mov_b32 v{ACC+i}, 0")
    stamp(15)
    a.vm_wait("sw")
    for p in range(2):
        for cc in range(2):
            c = 2*p+cc
            unpack(64+8*p+0+cc, 64+8*p+2+cc, vSw+2*c); unpack(64+8*p+4+cc, 64+8*p+6+cc, vSw+2*c+1)
    for r in range(11):
        a.vm_wait(f"k{r}")
        for p in range(2): unpack(80+22*p+2*r, 80+22*p+2*r+1, vK+2*r+p)
        if r >= 3:
            rr = r - 3
            for p in range(2):
                A = 80+22*p+2*rr; W = 64+8*p
                a(f"v_pk_mul_f32 v[{A}:{A+1}], v[{A}:{A+1}], v[{W+6}:{W+7}]")
                for jj in (2,1,0):
                    kr = 80+22*p+2*(rr+3-jj)
                    a(f"v_pk_fma_f32 v[{A}:{A+1}], v[{kr}:{kr+1}], v[{W+2*jj}:{W+2*jj+1}], v[{A}:{A+1}]")
    stamp(11)
    for r in range(8):
        a.vm_wait(f"v{r}")
        for p in range(2):
            A = 80+22*p+2*r
            unpack(124, 125, vV+2*r+p)
            a(f"v_pk_mul_f32 v[{A}:{A+1}], v[{A}:{A+1}], v[124:125]")
    for p in range(2):
        for cc in range(2):
            O = 136 + 8*p + 4*cc
            for m in range(4):
                a(f"v_cvt_pk_bf16_f32 v{O+m}, v{80+22*p+2*(7-2*m)+cc}, v{80+22*p+2*(6-2*m)+cc}")
            a(f"ds_write_b128 v{vT1}, v[{O}:{O+3}] offset:{(2*p+cc)*144}")
    a("s_waitcnt lgkmcnt(0)\ns_branch L_s1done")
    a.label("L_nos1")
    srd(rM1, pWD, 1966080)
    a(f"""s_mul_i32 s11, s{sRB64}, {48*1280}
        s_mul_i32 s12, s{sCB}, 160
        s_add_u32 s11, s11, s12
        s_movk_i32 s12, 1280
        s_mov_b32 m0, {PT}""")
    for n in range(8):
        a(f"""v_add_u32 v126, {64*n}, v1
            v_mul_u32_u24 v127, 6554, v126
            v_lshrrev_b32 v127, 16, v127
            v_mul_u32_u24 v128, 10, v127
            v_sub_u32 v128, v126, v128
            v_lshlrev_b32 v128, 4, v128
            v_mad_u32_u24 v128, v127, s12, v128""")
        if n == 7: a("s_mov_b32 exec_hi, 0")
        a(f"buffer_load_dwordx4 v128, s[{rM1}:{rM1+3}], s11 offen lds")
        if n < 7: a(f"s_add_u32 m0, m0, 1024")
    a("s_mov_b32 exec_hi, -1")
    comp_setup()
    for i in range(96): a(f"v_mov_b32 v{ACC+i}, 0")
    stamp(15); stamp(11)
    a.label("L_s1done")
    stamp(14)
    srd(rWS, pWS, WS_SIZE)
    srd(rX, pQ, 2621440)
    def g1_reads(st, w, x0, x1):
        b = FS[st]; out = []
        for kk in range(2):
            out.append(f"ds_read_b128 v[{b+48+4*kk}:{b+51+4*kk}], v{x0 if kk==0 else x1}")
            for ft in range(3):
                for mat in range(2):
                    r = b + ((kk*3+ft)*2+mat)*4
                    o = mat*6144 + kk*3072 + ft*64
                    out.append(f"ds_read_b64_tr_b16 v[{r}:{r+1}], v{w} offset:{o}")
                    out.append(f"ds_read_b64_tr_b16 v[{r+2}:{r+3}], v{w} offset:{o+768}")
        return out
    def g1_mfmas(st):
        b = FS[st]; out = []
        for kk in range(2):
            for ft in range(3):
                for mat in range(2):
                    r = b + ((kk*3+ft)*2+mat)*4
                    c = ACC + (mat*3+ft)*16
                    out.append(f"v_mfma_f32_32x32x16_bf16 v[{c}:{c+15}], v[{r}:{r+3}], v[{b+48+4*kk}:{b+51+4*kk}], v[{c}:{c+15}]")
        return out
    a("s_waitcnt vmcnt(0)")
    mk_tag()
    if cfg.cprio: a(f"s_setprio {cfg.cprio}")
    a("s_barrier")
    stamp(1); rstamp(59)
    for l in g1_reads(0, vWa, vXb[0], vXb[1]): a(l)
    sSB=68; sIT=69; sXS=70; sNEED=71; sLND=72
    a(f"""s_mov_b32 s{sSB}, {WSL}
        s_mov_b32 s{sXS}, 0
        s_mov_b32 s{sIT}, {NST//2}
        s_mov_b32 m0, 16
        v_add_u32 v{vWn[0]}, s{sSB}, v{vWa}
        v_mov_b32 v{vXn[0][0]}, v{vXb[2]}
        v_mov_b32 v{vXn[0][1]}, v{vXb[3]}
        s_waitcnt lgkmcnt(0)""")
    a.label("L_g1")
    def g1_addr(st):
        out = [f"s_add_u32 s{sSB}, s{sSB}, {WSL}", f"s_cmp_eq_u32 s{sSB}, {R*WSL}", f"s_cselect_b32 s{sSB}, 0, s{sSB}", f"v_add_u32 v{vWn[st]}, s{sSB}, v{vWa}"]
        if st == 1: out += [f"s_add_u32 s{sXS}, s{sXS}, {XSL}", f"s_and_b32 s{sXS}, s{sXS}, {NX*XSL-1}"]
        par = 1 - st
        out += [f"v_add_u32 v{vXn[st][0]}, s{sXS}, v{vXb[2*par]}", f"v_add_u32 v{vXn[st][1]}, s{sXS}, v{vXb[2*par+1]}"]
        return out
    need = []
    for kk in range(2):
        for ft in range(3):
            for mat in range(2): need.append(kk*13 + 1 + (ft*2+mat)*2 + 1)
    for st in range(2):
        ops = g1_reads(1-st, vWn[st], vXn[st][0], vXn[st][1]); mf = g1_mfmas(st)
        ad = g1_addr(1-st)
        k = 0; covered = -1
        for i_, m in enumerate(mf):
            nd = need[i_]
            if nd > covered:
                n = (25 - nd) + k
                if n <= 15: a(f"s_waitcnt lgkmcnt({n})"); covered = nd
                else: a("s_waitcnt lgkmcnt(15)"); covered = 25 + k - 15
            a(m)
            if i_ == 0:
                stamp(0, 70)
                if cfg.stamps == 2: a("s_add_u32 m0, m0, 1")
                if not cfg.x_nobar: a("s_barrier")
            for _ in range(cfg.g1spread[i_]):
                if k < len(ops):
                    if not cfg.x_noread: a(ops[k])
                    k += 1
            if i_ == 10:
                for l in ad[:3]: a(l)
            if i_ == 11:
                for l in ad[3:]: a(l)
        assert k == len(ops)
    a(f"s_sub_u32 s{sIT}, s{sIT}, 1\ns_cmp_lg_u32 s{sIT}, 0\ns_cbranch_scc1 L_g1")
    stamp(2); rstamp(61)
    a(f"s_setprio {cfg.eprio}\ns_waitcnt lgkmcnt(0)\ns_barrier")
    WS_=[48+20*i for i in range(5)]; AC2=176
    HSL=[[24,28,32,36],[148,152,156,160],[40,44,164,168]]
    vT=172
    a.vm_reset()
    def ld_wd(step):
        b = wslot[step]
        a(f"s_add_u32 s13, s{sWi[step // 3]}, {(step % 3)*5120}")
        for nt in range(5):
            a.vmem(f"buffer_load_dwordx4 v[{b+4*nt}:{b+4*nt+3}], v{vL if nt<4 else vL4}, s[{rWS}:{rWS+3}], s13 offen offset:{1024*(nt&3)} sc1", f"w{step}")
    def ld_h(step):
        hs = HSL[step % 3]
        a(f"s_add_u32 s13, s{sHi[step // 3]}, {(step % 3)*4096}")
        for m in range(4):
            a.vmem(f"buffer_load_dwordx4 v[{hs[m]}:{hs[m]+3}], v{vH[m]}, s[{rWS}:{rWS+3}], s13 offen sc1", f"h{step}")
    wslot = {s_: WS_[s_] for s_ in range(5)}
    wslot.update({5: WS_[0], 6: WS_[1], 7: WS_[0], 8: WS_[1], 9: WS_[0], 10: WS_[2], 11: WS_[3]})
    def hflag(c):
        a.vm_wait(f"hst{c}")
        gflag(sHF, 148)
        a(f"s_add_u32 s{sHF}, s{sHF}, 0x1000")
    wq = 0
    for ft in range(3):
        G = ACC + ft*16; U = ACC + (3+ft)*16; O = 24 + 8*ft
        for grp in range(2):
            es = [8*grp + i for i in range(8)]
            for e in es: a(f"v_mul_f32 v{G+e}, s{sNL}, v{G+e}")
            for e in es: a(f"v_exp_f32 v{G+e}, v{G+e}")
            for e in es: a(f"v_add_f32 v{G+e}, 1.0, v{G+e}")
            for e in es: a(f"v_rcp_f32 v{G+e}, v{G+e}")
            for e in es: a(f"v_mul_f32 v{G+e}, v{G+e}, v{U+e}")
            for i in range(4): a(f"v_cvt_pk_bf16_f32 v{O+4*grp+i}, v{G+8*grp+2*i}, v{G+8*grp+2*i+1}")
            if wq < cfg.wepi and 2*ft+grp in (1, 3):
                if wq == 0: lds_spin(F_S1, 1, 148)
                ld_wd(wq); wq += 1
        if ft < 2: stamp(12+ft)
    for ft in range(3):
        O = 24 + 8*ft
        for grp in range(2):
            a.vmem(f"buffer_store_dwordx4 v[{O+4*grp}:{O+4*grp+3}], v{vHS}, s[{rWS}:{rWS+3}], s{sHS} offen offset:{256*grp} sc1", "hst0")
        if ft < 2: a(f"s_add_u32 s{sHS}, s{sHS}, 4096")
    stamp(3)
    for i in range(80): a(f"v_mov_b32 v{AC2+i}, 0")
    lds_spin(C_G, 1, 148)
    hflag(0)
    stamp(7); rstamp(62)
    lds_inc(C_H, 150)
    lds_spin(C_H, 4, 150)
    if cfg.wepi == 0: lds_spin(F_S1, 1, 150)
    for i in range(cfg.wepi, cfg.wmid): ld_wd(i)
    poll_issue(vF, sHP, vT, 1, "pA")
    for i in range(cfg.wmid, 5): ld_wd(i)
    for n in range(3):
        a(f"s_add_u32 m0, s{sW25}, {QT+1024*n}\n" + ("s_mov_b32 exec_hi, 0" if n == 2 else "s_nop 0"))
        a.vmem(f"buffer_load_dwordx4 v{vG3[n]}, s[{rX}:{rX+3}], s{sRC} offen lds", "q")
    a("s_mov_b32 exec_hi, -1")
    spin(vF, sHP, vT, first_wait=wait_tag("pA"))
    stamp(4); rstamp(58)
    for s_ in range(3): ld_h(s_)
    a.vmem(f"buffer_load_dword v{vGt}, v{vGo}, s[{rWS}:{rWS+3}], s{sGA} offen sc1", "gate")
    a(f"v_min_u32 v{vF}, 39, v1\nv_lshlrev_b32 v{vF}, 3, v{vF}")
    def rd_wd(s_):
        b = wslot[s_]
        return [f"ds_read_b128 v[{b+4*nt}:{b+4*nt+3}], v{vP} offset:{(s_-5)*5120+nt*1024}" for nt in range(5)]
    Yr = WS_[4]; Qr = WS_[4] + 10; GA = WS_[0]; TT = WS_[1]
    ga_code = []
    for i in range(10):
        t = TT + 4*(i & 3)
        ga_code += [f"v_lshlrev_b32 v{t}, 16, v{Yr+i}", f"v_and_b32 v{t+1}, s{sMASK}, v{Yr+i}",
                    f"v_lshlrev_b32 v{t+2}, 16, v{Qr+i}", f"v_and_b32 v{t+3}, s{sMASK}, v{Qr+i}",
                    f"v_mul_f32 v{t}, v{t}, v{t+2}", f"v_mul_f32 v{t+1}, v{t+1}, v{t+3}",
                    f"v_mul_f32 v{GA+2*i}, v{t}, v{vT}", f"v_mul_f32 v{GA+2*i+1}, v{t+1}, v{vT}"]
    for step in range(12):
        hs = HSL[step % 3]; wb = wslot[step]
        a.vm_wait(f"h{step}")
        if step >= 10 or cfg.wmid <= step <= 4: a.vm_wait(f"w{step}")
        if 5 <= step <= 9: a("s_waitcnt lgkmcnt(0)")
        stamp(40+step)
        if step == 4: lds_spin(F_WD, 1, 175)
        fill = rd_wd(step+1) if 5 <= step+1 <= 9 else []
        per = 1
        if step == 10:
            a.vm_wait("y")
            for nt in range(5): a(f"ds_read_b64_tr_b16 v[{Yr+2*nt}:{Yr+2*nt+1}], v{vY} offset:{nt*512}")
            for nt in range(5): a(f"ds_read_b64 v[{Qr+2*nt}:{Qr+2*nt+1}], v{vQ} offset:{nt*32}")
            fill = [f"v_lshlrev_b32 v{vT}, 16, v{vGt}", f"v_and_b32 v{vT+1}, s{sMASK}, v{vGt}"] + ["s_nop 0"]*6 + ["s_waitcnt lgkmcnt(0)"] + ga_code[:31]
            per = 2
        if step == 11: fill = ga_code[31:]; per = 3
        i = 0
        for m in range(4):
            for nt in range(5):
                c = AC2 + (m*5+nt)*4
                a(f"v_mfma_f32_16x16x32_bf16 v[{c}:{c+3}], v[{wb+4*nt}:{wb+4*nt+3}], v[{hs[m]}:{hs[m]+3}], v[{c}:{c+3}]")
                for _ in range(per):
                    if i < len(fill): a(fill[i]); i += 1
        assert i == len(fill)
        if step + 3 < 12: ld_h(step+3)
        if step in (2, 3): ld_wd(step+8)
        if step == cfg.ystep - 2: poll_issue(vF, sYP, vT, 2, "ypoll")
        if step == cfg.ystep:
            spin(vF, sYP, vT, 2, first_wait=wait_tag("ypoll"))
            stamp(9)
            for n in range(3):
                a(f"s_add_u32 m0, s{sW25}, {YT+1024*n}\n" + ("s_mov_b32 exec_hi, 0" if n == 2 else "s_nop 0"))
                a.vmem(f"buffer_load_dwordx4 v{vYo}, s[{rWS}:{rWS+3}], s{sYo} offen sc1 lds", "y")
                if n < 2: a(f"s_add_u32 s{sYo}, s{sYo}, {32*4096}")
            a("s_mov_b32 exec_hi, -1")
    stamp(5); rstamp(57)
    srd(rM1, pOUT, 2621440)
    a("s_nop 4")
    for m in range(1, 4):
        for nt in range(5):
            c = AC2 + (m*5+nt)*4
            a(f"ds_write_b128 v{vP}, v[{c}:{c+3}] offset:{((m-1)*5+nt)*1024}")
    a("s_waitcnt lgkmcnt(0)\ns_barrier")
    P=88
    for nt in range(5):
        for sl in range(3):
            r = P + (nt*3+sl)*4
            a(f"ds_read_b128 v[{r}:{r+3}], v{vRR[sl]} offset:{(sl*5+nt)*1024}")
    a(f"v_mov_b32 v{vT}, v{vT+1}")
    for nt in range(5):
        c = AC2 + nt*4
        a(f"s_waitcnt lgkmcnt({12-3*nt+nt})")
        for sl in range(3):
            r = P + (nt*3+sl)*4
            a(f"v_pk_add_f32 v[{c}:{c+1}], v[{c}:{c+1}], v[{r}:{r+1}]\nv_pk_add_f32 v[{c+2}:{c+3}], v[{c+2}:{c+3}], v[{r+2}:{r+3}]")
        for h in range(2):
            x = c + 2*h
            a(f"v_pk_fma_f32 v[{x}:{x+1}], v[{x}:{x+1}], v[{vT}:{vT+1}], v[{GA+4*nt+2*h}:{GA+4*nt+2*h+1}]")
        a(f"v_cvt_pk_bf16_f32 v{c}, v{c}, v{c+1}\nv_cvt_pk_bf16_f32 v{c+1}, v{c+2}, v{c+3}")
        a(f"ds_write_b64 v{vO}, v[{c}:{c+1}] offset:{OTO+nt*32}")
    a("s_waitcnt lgkmcnt(0)")
    for n in range(3): a(f"ds_read_b128 v[{P+4*n}:{P+4*n+3}], v{vP} offset:{OTO+1024*n}")
    for n in range(3):
        a(f"s_waitcnt lgkmcnt({2-n})\nbuffer_store_dwordx4 v[{P+4*n}:{P+4*n+3}], v{vG3[n]}, s[{rM1}:{rM1+3}], s{sRC} offen {cfg.ost}")
    stamp(6); rstamp(63)
    stamp_store(26)
    a(f"s_or_b32 s11, s2, s{sWAVE}\ns_cmp_lg_u32 s11, 0\ns_cbranch_scc1 L_end")
    a(f"s_mov_b32 s12, {cfg.spin_max}\ns_movk_i32 s11, {S1FLAG}")
    a.label("L_ep")
    for i in range(4): a(f"buffer_load_dwordx4 v[{24+4*i}:{27+4*i}], v{vL}, s[{rWS}:{rWS+3}], s11 offen offset:{1024*i} sc1")
    a("s_waitcnt vmcnt(0)")
    for i in range(16): a(f"v_xor_b32 v{24+i}, s{sTAG}, v{24+i}")
    for i in range(1, 16): a(f"v_or_b32 v24, v24, v{24+i}")
    a(f"""v_cmp_ne_u32 vcc, 0, v24
        s_sub_u32 s12, s12, 1
        s_cselect_b64 vcc, 0, vcc
        s_cmp_eq_u64 vcc, 0
        s_cbranch_scc0 L_ep
        v_mov_b32 v18, s{sTAG}
        v_mov_b32 v19, 0
        s_mov_b64 exec, 1
        buffer_store_dword v18, v19, s[{rWS}:{rWS+3}], 0 offen sc1""")
    a.label("L_end")
    a("s_endpgm")
    a.label("L_code_end")
    body = a.text()
    ref = open(f"cdna_kernels/{NAME}.s.ref").read()
    head = [l for l in ref.split("\n") if l.startswith(";") and "@launch" not in l]
    out = "\n".join(head) + f"\n; @launch grid=(256,1,1) block=(512,1,1) lds={LDS_BYTES}\n"
    out += f""".amdgcn_target "amdgcn-amd-amdhsa--gfx950"
.text
.globl {NAME}_kernel
.p2align 8
.type {NAME}_kernel,@function
{NAME}_kernel:
{body}.section .rodata,"a"
.p2align 6
.amdhsa_kernel {NAME}_kernel
  .amdhsa_next_free_vgpr 256
  .amdhsa_next_free_sgpr 102
  .amdhsa_accum_offset 256
  .amdhsa_group_segment_fixed_size 0
  .amdhsa_kernarg_size 112
  .amdhsa_user_sgpr_count 2
  .amdhsa_user_sgpr_kernarg_segment_ptr 1
  .amdhsa_system_sgpr_workgroup_id_x 1
.end_amdhsa_kernel
"""
    return out, body

if __name__ == "__main__":
    outp = sys.argv[1] if len(sys.argv) > 1 else "k.s"
    for kv in sys.argv[2:]:
        k, v = kv.split("="); setattr(cfg, k, eval(v))
    out, body = gen(cfg)
    errs = check_hazards(body)
    for e in errs: print("HAZARD", e)
    open(outp, "w").write(out)
    print("wrote", outp, len(out), "bytes;", len(errs), "hazards")
```

```python
import sys, re
from asmlib import *
NAME = "gated_mix__ssm_conv_h3__glu_gated_glu__prompt"
EPOCH=0; S1FLAG=0x1000; HFLAG=0x2000; YFLAG=0x6000; WFLAG=0x5000; GATE=0x8000; STAMP=0x10000
KVR=0x100000; WDT=0x400000; HT=0x600000; YTW=0xC00000; WS_SIZE=0x1000000
OOB = 0x80000000

class Cfg:
    stamps = 0
    spin_max = 1 << 16
    psleep = 6
    tflag = 4
    tpoll = 12
    tchk = 15
    tconv = 16
    pre_n = 4
    hrot = False
    bla = 5
    x_nobar = False
    x_nodma = False
    x_noread = False
    ystep = 8
    wepi = 0
    wmid = 5
    cper = 1
    wsoff = 0
    pairbar = False
    ycoop = False
    g1per = 2
    map48 = True
    gearly = 0
    krot = 0
    g1map = 0
    prog = True
    cpause = -1
    epipe = True
    xst = 1
    g1ord = 0
    x_noconv = False
    x_nost = False
    ptlate = True
    tpt = 6
    tpt2 = 9
    tpt3 = 13
    tpt4 = 17
    x_nopt = False
    x_nos1 = False
    g1one = True
    ost = ''
    vprio = 0
    eprio = 3
    g1spread = [2,3,2,3,2,3,2,3,2,2,2,0]
    cprio = 1
    la = 3
    lp = 2
    lsleep = 1
    aprio = 2
cfg = Cfg()

def gen(cfg):
    R = 6; WSL = 12288; XB = R*WSL; XSL = 16384; NX = 4
    CB = XB + 3*XSL
    HE=0; HO=4160; XR=8320; CSZ=12928
    T1 = XB + 4*XSL; PT = T1 + 11520; DUMMY = PT + 8192
    CTRL = CB + 3*CSZ + 128
    LAND=CTRL; CONS=CTRL+16; F_S1=CTRL+32; F_WD=CTRL+36; C_H=CTRL+40; C_G=CTRL+44; C_Y=CTRL+0; F_WT=CTRL+4; C_E=CTRL+8; CDUM=CTRL+64; GW=CTRL+384
    LDS_BYTES = 163840
    assert GW + 1280 + 256 <= LDS_BYTES and DUMMY + 600 <= CTRL
    GRP = [24576, 45056, 65536, 86016, 0]; QT = 106496; EX = 116736
    a = Asm()
    NST = 20
    sWAVE=3; sX=4; sJ=5; sRB128=6; sFB=7; sRB64=8; sCB=9; sTAG=10
    pQ,pK,pV,pSH,pSK,pSD,pBX,pWG,pWU,pWD,pGW,pOUT,pDBG,pWS = [16+2*i for i in range(14)]
    rWS=44; rX=48; rW=52; rM1=56; rM2=60; rM3=64; rSK=84
    sMASK=101
    sRot = sJ if cfg.hrot else 100
    def srd(r, p, size):
        a(f"s_mov_b64 s[{r}:{r+1}], s[{p}:{p+1}]\ns_mov_b32 s{r+2}, {size}\ns_mov_b32 s{r+3}, 0x20000")
    def stamp(k, sreg=None):
        if cfg.stamps == 2 or (cfg.stamps == 3 and sreg is None and k < 16):
            a(f"s_memtime s[80:81]\ns_waitcnt lgkmcnt(0)\nv_writelane_b32 v3, s80, {k if sreg is None else 'm0'}")
    def rstamp(k):
        if cfg.stamps:
            a(f"s_memrealtime s[80:81]\ns_waitcnt lgkmcnt(0)\nv_writelane_b32 v3, s80, {k}")
    def stamp_store(vtmp):
        if not cfg.stamps: return
        a(f"s_lshl_b32 s11, s2, 3\ns_add_u32 s11, s11, s{sWAVE}\ns_lshl_b32 s11, s11, 8\ns_add_u32 s11, s11, {STAMP}")
        a(f"v_lshlrev_b32 v{vtmp}, 2, v1\nbuffer_store_dword v3, v{vtmp}, s[{rWS}:{rWS+3}], s11 offen\ns_waitcnt vmcnt(0)")
    lab = [0]
    def newlab(p): lab[0] += 1; return f"L_{p}{lab[0]}"
    def poll_issue(voff, soff, vt, n, tag=None):
        op = {1: "dword", 2: "dwordx2"}[n]
        a.vmem(f"buffer_load_{op} {vr(vt, n)}, v{voff}, s[{rWS}:{rWS+3}], s{soff} offen sc1", tag)
    def poll_cmp(vt, n):
        if n == 2: a(f"v_xor_b32 v{vt}, s{sTAG}, v{vt}\nv_xor_b32 v{vt+1}, s{sTAG}, v{vt+1}\nv_or_b32 v{vt}, v{vt}, v{vt+1}\nv_cmp_ne_u32 vcc, 0, v{vt}")
        else: a(f"v_cmp_ne_u32 vcc, s{sTAG}, v{vt}")
    def spin(voff, soff, vt, n=1, first_wait=None):
        L = newlab("spin")
        a(f"s_mov_b32 s12, {cfg.spin_max}")
        if first_wait is not None:
            first_wait(); a(f"s_branch {L}_chk")
        else:
            a(f"s_branch {L}_ld")
        a.label(L)
        a(f"s_sleep {cfg.psleep}")
        a.label(L + "_ld")
        keep = list(a.vm); poll_issue(voff, soff, vt, n); a.vm = keep
        a("s_waitcnt vmcnt(0)")
        a.label(L + "_chk")
        poll_cmp(vt, n)
        a(f"s_sub_u32 s12, s12, 1\ns_cselect_b64 vcc, 0, vcc\ns_cmp_eq_u64 vcc, 0\ns_cbranch_scc0 {L}")
    def unpack(dlo, dhi, src):
        a(f"v_lshlrev_b32 v{dlo}, 16, v{src}\nv_and_b32 v{dhi}, s{sMASK}, v{src}")
    def seq(*fs):
        def g():
            for f in fs: f()
        return g
    def wait_tag(tag): return lambda: a.vm_wait(tag)
    def mk_tag(): a(f"s_waitcnt lgkmcnt(0)\ns_mul_i32 s{sTAG}, s{sTAG}, 0x9E3779B1\ns_add_u32 s{sTAG}, s{sTAG}, 0x7F4A7C15")
    vCT = 0
    def lds_spin(off, val, vt, quad=False):
        L = newlab("ls")
        a(f"s_mov_b32 s12, {cfg.spin_max*16}")
        if cfg.lsleep: a(f"s_branch {L}_rd")
        a.label(L)
        if cfg.lsleep:
            a(f"s_sleep {cfg.lsleep}")
            a.label(L + "_rd")
        if quad:
            a(f"""ds_read_b128 v[{vt}:{vt+3}], v{vCT} offset:{off-CTRL}
                s_waitcnt lgkmcnt(0)
                v_min_u32 v{vt}, v{vt}, v{vt+1}
                v_min3_u32 v{vt}, v{vt}, v{vt+2}, v{vt+3}
                s_nop 0""")
        else:
            a(f"ds_read_b32 v{vt}, v{vCT} offset:{off-CTRL}\ns_waitcnt lgkmcnt(0)")
        a(f"""v_readfirstlane_b32 s11, v{vt}
            s_sub_u32 s12, s12, 1
            s_cselect_b32 s11, -1, s11
            s_cmp_lt_u32 s11, {val}
            s_cbranch_scc1 {L}""")
    def lds_set(off, val, vt):
        a(f"v_mov_b32 v{vt}, {val}\ns_mov_b64 exec, 1\nds_write_b32 v{vCT}, v{vt} offset:{off-CTRL}\ns_mov_b64 exec, -1")
    def lds_inc(off, vt):
        a(f"v_mov_b32 v{vt}, 1\ns_mov_b64 exec, 1\nds_add_u32 v{vCT}, v{vt} offset:{off-CTRL}\ns_mov_b64 exec, -1")
    def gflag(soff, vt):
        a(f"v_mov_b32 v{vt}, s{sTAG}\nv_mov_b32 v{vt+1}, 0\ns_mov_b64 exec, 1")
        a.vmem(f"buffer_store_dword v{vt}, v{vt+1}, s[{rWS}:{rWS+3}], s{soff} offen sc1", "flag")
        a("s_mov_b64 exec, -1")

    a("s_cmp_ge_u32 s2, 256\ns_cbranch_scc1 L_end")
    stamp(0); rstamp(60)
    a("s_load_dwordx16 s[16:31], s[0:1], 0\ns_load_dwordx8 s[32:39], s[0:1], 64\ns_load_dwordx4 s[40:43], s[0:1], 96")
    a(f"v_lshrrev_b32 v2, 6, v0\nv_and_b32 v1, 63, v0\ns_mov_b32 s{sMASK}, 0xffff0000\ns_mov_b32 s100, 0")
    a("s_getpc_b64 s[14:15]")
    a.label("L_pc")
    a("v_lshlrev_b32 v4, 7, v0\nv_min_u32 v4, L_code_end-L_pc-4, v4")
    a(f"v_readfirstlane_b32 s{sWAVE}, v2")
    a("v_cmp_gt_u32 vcc, (L_code_end-L_pc+127)/128, v0\ns_and_saveexec_b64 s[12:13], vcc\ns_cbranch_execz L_nopf")
    a("global_load_dword v135, v4, s[14:15]")
    a.label("L_nopf")
    a(f"s_mov_b64 exec, -1\nv_mov_b32 v{vCT}, {CTRL}")
    a(f"""s_and_b32 s{sX}, s2, 7
        s_lshr_b32 s{sJ}, s2, 3
        s_and_b32 s11, s{sX}, 1
        s_lshr_b32 s12, s{sX}, 1
        s_and_b32 s13, s{sJ}, 7
        s_lshl3_add_u32 s{sRB128}, s11, s13
        s_lshr_b32 s13, s{sJ}, 3
        s_lshl2_add_u32 s{sFB}, s12, s13
        s_and_b32 s13, s{sJ}, 3
        s_lshl2_add_u32 s{sCB}, s11, s13
        s_lshr_b32 s13, s{sJ}, 2
        s_lshl3_add_u32 s{sRB64}, s12, s13""")
    if cfg.g1map == 1:
        a(f"s_and_b32 s{sRB128}, s{sJ}, 15\ns_lshr_b32 s13, s{sJ}, 4\ns_lshl1_add_u32 s{sFB}, s{sX}, s13")
    if cfg.g1map == 2:
        a(f"s_and_b32 s11, s{sX}, 3\ns_and_b32 s13, s{sJ}, 3\ns_lshl2_add_u32 s{sRB128}, s11, s13\ns_lshr_b32 s11, s{sX}, 2\ns_lshr_b32 s13, s{sJ}, 2\ns_lshl3_add_u32 s{sFB}, s11, s13")
    if cfg.map48:
        a(f"s_and_b32 s{sCB}, s{sJ}, 7\ns_lshr_b32 s13, s{sJ}, 3\ns_lshl2_add_u32 s{sRB64}, s{sX}, s13")
    a(f"""s_cmp_lt_u32 s{sWAVE}, 4
        s_cbranch_scc1 L_comp""")

    sA=68; sLW=69; sLX=70; sOW=71; sOX=72; sOX2=73
    vW0,vW1,vW2,vXe,vXo = 4,5,6,7,2
    vLA=14
    vGx=136; vGw=137; vGx2=138; vGa=140
    a(f"s_sub_u32 s{sA}, s{sWAVE}, 4")
    a("s_mov_b32 s11, 43691\ns_movk_i32 s12, 3072")
    for i, v in enumerate((vW0,vW1,vW2)):
        a(f"""v_add_u32 v8, {64*i}, v1
            v_mul_u32_u24 v9, s11, v8
            v_lshrrev_b32 v9, 19, v9
            v_mul_u32_u24 v10, 12, v9
            v_sub_u32 v8, v8, v10
            v_lshrrev_b32 v10, 2, v9
            v_and_b32 v10, 2, v10
            v_xor_b32 v8, v8, v10
            v_lshlrev_b32 v8, 4, v8
            v_mad_u32_u24 v{v}, v9, s12, v8""")
        if i: a(f"v_subrev_u32 v{v}, {1024*i}, v{v}")
    a(f"""v_lshrrev_b32 v8, 3, v1
        v_mul_u32_u24 v8, 1280, v8
        v_lshrrev_b32 v9, 4, v1
        v_xor_b32 v9, v9, v1
        v_and_b32 v9, 7, v9
        v_lshl_add_u32 v{vXe}, v9, 4, v8
        v_xor_b32 v9, 4, v9
        v_lshl_add_u32 v{vXo}, v9, 4, v8
        v_add_u32 v{vXo}, {10240-1024}, v{vXo}
        s_and_b32 s11, s{sA}, 1
        s_lshr_b32 s12, s{sA}, 1
        s_mul_i32 s{sLW}, s12, 6144
        s_mul_i32 s13, s11, 3072
        s_add_u32 s{sLW}, s{sLW}, s13
        s_lshl_b32 s{sLX}, s{sA}, 12
        s_add_u32 s{sLX}, s{sLX}, {XB}
        s_mul_i32 s{sOW}, s{sFB}, 192
        s_mul_i32 s13, s11, 49152
        s_add_u32 s{sOW}, s{sOW}, s13
        s_lshl2_add_u32 s13, s{sRB128}, s{sA}
        s_mul_i32 s{sOX}, s13, 40960
        s_add_u32 s{sOX2}, s{sOX}, {20480-2048}""")
    sKR=96; sK0=97; sK1=98; sKW=99
    if cfg.krot:
        if cfg.krot == 1:   a(f"s_lshr_b32 s{sKR}, s{sX}, 1\ns_mul_i32 s{sKR}, s{sKR}, 5\ns_lshr_b32 s{sKR}, s{sKR}, 1")
        elif cfg.krot == 2: a(f"s_mul_i32 s{sKR}, s{sFB}, 5\ns_lshr_b32 s{sKR}, s{sKR}, 3")
        elif cfg.krot == 3: a(f"s_mul_i32 s{sKR}, s{sX}, 5\ns_lshr_b32 s{sKR}, s{sKR}, 2")
        a(f"""s_mul_i32 s11, s{sKR}, {2*98304}
            s_add_u32 s{sOW}, s{sOW}, s11
            s_lshl_b32 s11, s{sKR}, 7
            s_add_u32 s{sOX}, s{sOX}, s11
            s_add_u32 s{sOX2}, s{sOX2}, s11
            s_mov_b32 s{sK0}, s{sKR}
            s_mov_b32 s{sK1}, s{sKR}
            s_lshl_b32 s{sKW}, s{sKR}, 1""")
    a("s_waitcnt lgkmcnt(0)")
    stamp(8)
    if cfg.wsoff: a(f"s_add_u32 s{pWS}, s{pWS}, {cfg.wsoff}\ns_addc_u32 s{pWS+1}, s{pWS+1}, 0")
    a(f"s_load_dword s{sTAG}, s[{pWS}:{pWS+1}], {EPOCH}")
    a(f"s_cmp_lt_u32 s{sA}, 2\ns_cselect_b64 s[{rW}:{rW+1}], s[{pWG}:{pWG+1}], s[{pWU}:{pWU+1}]\ns_mov_b32 s{rW+2}, 1966080\ns_mov_b32 s{rW+3}, 0x20000")
    srd(rX, pQ, 2621440)
    def x_half(u, half, tag):
        a(f"s_add_u32 m0, s{sLX}, {(u % NX)*XSL}\ns_nop 0")
        so = sOX if half == 0 else sOX2
        a.vmem(f"buffer_load_dwordx4 v{vXe}, s[{rX}:{rX+3}], s{so} offen offset:{2048*half} lds", tag)
        a.vmem(f"buffer_load_dwordx4 v{vXo}, s[{rX}:{rX+3}], s{so} offen offset:{2048*half+1024} lds", tag)
        a(f"s_add_u32 s{so}, s{so}, 128")
        if cfg.krot:
            c = sK0 if half == 0 else sK1
            a(f"s_add_u32 s{c}, s{c}, 1\ns_cmp_eq_u32 s{c}, 10\ns_cselect_b32 s11, 1280, 0\ns_sub_u32 s{so}, s{so}, s11")
    def dma_stage(t):
        tag = f"dma{t}"
        if t == 0: x_half(0, 0, tag)
        if t % 2 == 0: x_half(t//2, 1, tag)
        a(f"s_add_u32 m0, s{sLW}, {(t % R)*WSL}\ns_nop 0")
        for i, v in enumerate((vW0,vW1,vW2)):
            a.vmem(f"buffer_load_dwordx4 v{v}, s[{rW}:{rW+3}], s{sOW} offen offset:{1024*i} lds", tag)
        a(f"s_add_u32 s{sOW}, s{sOW}, 98304")
        if cfg.krot:
            a(f"s_add_u32 s{sKW}, s{sKW}, 1\ns_cmp_eq_u32 s{sKW}, 20\ns_cselect_b32 s11, {20*98304}, 0\ns_sub_u32 s{sOW}, s{sOW}, s11")
        if t % 2 == 1 and t + 1 < NST: x_half((t+1)//2, 0, tag + "x")
    a.vm_reset()
    dma_stage(0); dma_stage(1)
    srd(rWS, pWS, WS_SIZE)
    a(f"""s_lshl_b32 s11, s{sCB}, 5
        s_add_u32 s11, s11, s{sRB64}
        s_lshl_b32 s11, s11, 4
        s_lshl2_add_u32 s11, s{sA}, s11
        s_add_u32 s78, s11, {S1FLAG}""")
    vm_common = list(a.vm)
    a(f"s_cmp_eq_u32 s{sWAVE}, 7\ns_cbranch_scc1 L_svc")

    def gate_setup():
        a(f"""s_lshr_b32 s11, s{sFB}, 1
            s_lshl_b32 s11, s11, 4
            v_and_b32 v10, 15, v1
            v_add_u32 v10, s11, v10
            v_lshrrev_b32 v11, 4, v1
            v_lshlrev_b32 v{vGw}, 4, v11
            v_add_u32 v{vGw}, {GW}, v{vGw}
            v_bfe_u32 v12, v10, 1, 3
            v_xor_b32 v11, v11, v12
            v_lshlrev_b32 v11, 4, v11
            v_lshl_add_u32 v11, v10, 7, v11
            v_add_u32 v{vGx}, {XB}, v11
            v_xor_b32 v{vGx2}, 64, v{vGx}""")
        for i in range(4): a(f"v_mov_b32 v{vGa+i}, 0")
        if cfg.krot: a(f"s_lshl_b32 s93, s{sKR}, 7")
    def gate_rd(u):
        if cfg.krot:
            a(f"""v_add_u32 v139, s93, v{vGw}
                s_add_u32 s93, s93, 128
                s_cmp_eq_u32 s93, 1280
                s_cselect_b32 s93, 0, s93""")
        gw, o = (139, 0) if cfg.krot else (vGw, 128*u)
        a(f"""ds_read_b128 v[144:147], v{vGx} offset:{(u % NX)*XSL}
            ds_read_b128 v[148:151], v{gw} offset:{o}
            ds_read_b128 v[152:155], v{vGx2} offset:{(u % NX)*XSL}
            ds_read_b128 v[156:159], v{gw} offset:{o+64}""")
    def gate_dot():
        a(f"""s_waitcnt lgkmcnt(0)
            v_mfma_f32_16x16x32_bf16 v[{vGa}:{vGa+3}], v[148:151], v[144:147], v[{vGa}:{vGa+3}]
            v_mfma_f32_16x16x32_bf16 v[{vGa}:{vGa+3}], v[156:159], v[152:155], v[{vGa}:{vGa+3}]""")
    def gate_fin():
        g = vGa
        a(f"""s_lshl_b32 s11, s{sRB128}, 9
            s_lshr_b32 s12, s{sFB}, 1
            s_lshl_b32 s12, s12, 6
            s_add_u32 s11, s11, s12
            s_add_u32 s11, s11, {GATE}
            s_and_b32 s12, s{sFB}, 1
            s_lshl_b32 s12, s12, 3
            s_lshl_b32 s12, 0xff, s12
            s_nop 0
            v_cvt_pk_bf16_f32 v{g}, v{g}, v{g}
            v_lshlrev_b32 v{g}, 16, v{g}
            v_mul_f32 v{g}, 0xbfb8aa3b, v{g}
            v_exp_f32 v{g}, v{g}
            s_nop 0
            v_add_f32 v{g}, 1.0, v{g}
            v_rcp_f32 v{g}, v{g}
            s_nop 0
            v_cvt_pk_bf16_f32 v{g}, v{g}, v{g}
            v_lshlrev_b32 v{g}, 16, v{g}
            v_sub_f32 v{g+1}, 1.0, v{g}
            v_cvt_pk_bf16_f32 v{g}, v{g}, v{g+1}
            v_lshlrev_b32 v{g+1}, 2, v1
            s_mov_b32 exec_lo, s12
            s_mov_b32 exec_hi, 0""")
        a.vmem(f"buffer_store_dword v{g}, v{g+1}, s[{rWS}:{rWS+3}], s11 offen sc1", "gate")
        a("s_mov_b64 exec, -1")
    def aux_loop(side, gate=False):
        if 'pre' in side: side['pre']()
        a(f"s_setprio {cfg.aprio}")
        mk_tag()
        stamp(9)
        a.vm_wait("dma0"); stamp(10)
        for t in range(2, cfg.pre_n): dma_stage(t)
        if cfg.pairbar: a.vm_wait("dma1")
        a("s_waitcnt lgkmcnt(0)\ns_barrier")
        if 'post' in side: side['post']()
        nxt = cfg.pre_n
        while nxt < (6 if cfg.pairbar else cfg.bla): dma_stage(nxt); nxt += 1
        if gate: gate_rd(0)
        for t in range(NST):
            if cfg.pairbar:
                if t % 2 == 1:
                    if t + 2 < NST: a.vm_wait(f"dma{t+2}")
                    stamp(16+t)
                    a("s_barrier")
                    stamp(40+t)
                    while nxt <= t + 5 and nxt < NST: dma_stage(nxt); nxt += 1
            else:
                if t + 1 < NST: a.vm_wait(f"dma{t+1}")
                stamp(16+t)
                if not cfg.x_nobar: a("s_barrier")
                stamp(40+t)
                while nxt <= t + cfg.bla and nxt < NST: dma_stage(nxt); nxt += 1
            if gate and t % 2 == 0: gate_dot()
            if gate and t % 2 == 1 and t + 1 < NST: gate_rd((t+1)//2)
            if t == cfg.tflag:
                if "st1" in a.vm: a.vm_wait("st1")
                gflag(78, 160)
            if gate and t == NST-2: gate_fin()
            if t in side: side[t]()

    vK=136; vV=48; vSw=126
    vKh,vK0,vK1,vSh,vT1 = 40,42,43,44,45
    def s1_store():
        a(f"""s_lshl_b32 s11, s{sA}, 6
            v_add_u32 v69, s11, v1
            v_lshrrev_b32 v67, 3, v69
            v_and_b32 v68, 7, v69
            v_lshlrev_b32 v68, 4, v68
            v_mul_u32_u24 v64, 144, v67
            s_mov_b32 s12, {T1}
            v_add3_u32 v64, v64, v68, s12
            v_lshl_add_u32 v65, v67, 12, v68
            s_mul_i32 s11, s{sCB}, {80*4096}
            s_lshl_b32 s12, s{sRB64}, 7
            s_sub_u32 s11, s11, s12
            s_add_u32 s11, s11, {KVR+1984*2}
            v_cmp_gt_u32 vcc, 64, v69
            v_mov_b32 v67, {OOB}""")
        for i in range(4):
            a(f"ds_read_b128 v[{72+4*i}:{72+4*i+3}], v64 offset:{i*24*144}")
        a("v_cndmask_b32 v66, v67, v65, vcc")
        for i in range(4):
            a(f"s_waitcnt lgkmcnt({3-i})")
            a.vmem(f"buffer_store_dwordx4 v[{72+4*i}:{72+4*i+3}], v{65 if i<3 else 66}, s[{rWS}:{rWS+3}], s11 offen sc1", "st1")
            if i < 3: a(f"s_add_u32 s11, s11, {24*4096}")
    sD=74; sCR=75; sDv=76; sVal=77
    vA=[16,17,18,19]; vB=20; vE=21
    cAcc=32; cS=[64,128]
    def conv_ids():
        a(f"""s_cmp_lt_u32 s{sRB64}, 16
            s_cselect_b32 s11, 3, 2
            s_cselect_b32 s12, 0, 16
            s_cmp_lt_u32 s{sA}, s11
            s_cselect_b32 s{sVal}, 1, 0
            s_cselect_b32 s14, s{sA}, 0
            s_mul_i32 s13, s{sRB64}, s11
            s_add_u32 s13, s13, s12
            s_mul_i32 s{sD}, s{sCB}, 80
            s_add_u32 s{sD}, s{sD}, s13
            s_add_u32 s{sD}, s{sD}, s14
            s_mul_i32 s{sCR}, s{sA}, {CSZ}
            s_add_u32 s{sCR}, s{sCR}, {CB}
            s_lshl_b32 s11, s{sD}, 1
            s_and_b32 s11, s11, 0xfffffffc
            s_load_dword s{sDv}, s[{pSD}:{pSD+1}], s11""")
        srd(rSK, pSK, 2621440)
        a(f"""v_and_b32 v10, 15, v1
            v_lshrrev_b32 v11, 4, v1
            v_and_b32 v12, 1, v1
            v_lshlrev_b32 v13, 1, v10
            v_lshl_add_u32 v13, v11, 4, v13
            v_cmp_eq_u32 vcc, 1, v12
            v_mov_b32 v8, {HO+32-32}
            v_mov_b32 v9, {HE+32-30}
            v_cndmask_b32 v8, v8, v9, vcc
            v_add3_u32 v{vA[0]}, v13, v8, s{sCR}
            v_add_u32 v{vA[1]}, 1024, v{vA[0]}
            v_add_u32 v{vA[2]}, 2048, v{vA[0]}
            v_add_u32 v{vA[3]}, 3072, v{vA[0]}
            v_lshlrev_b32 v13, 5, v10
            v_lshlrev_b32 v8, 4, v11
            v_sub_u32 v8, v8, v13
            v_add_u32 v8, {XR+4064-3584}, v8
            v_add_u32 v{vB}, s{sCR}, v8
            v_lshlrev_b32 v8, 3, v11
            v_add_u32 v8, v8, v13
            v_add_u32 v22, s{sCR}, v8
            v_sub_u32 v{vE}, {XR+4088-3584}, v8
            v_add_u32 v{vE}, s{sCR}, v{vE}
            v_lshlrev_b32 v8, 4, v1
            v_add_u32 v9, 2, v8
            v_add_u32 v23, s{sCR}, v8
            s_waitcnt lgkmcnt(0)
            s_bitcmp1_b32 s{sD}, 0
            s_cselect_b32 s12, 0, 16
            s_lshl_b32 s{sDv}, s{sDv}, s12
            s_and_b32 s{sDv}, s{sDv}, 0xffff0000""")
        for i in range(32): a(f"v_mov_b32 v{cAcc+i}, 0")
    def conv_pre():
        a(f"""s_cmp_eq_u32 s{sVal}, 0
            s_cselect_b32 s12, {OOB}, 0
            v_add_u32 v8, s12, v8
            v_add_u32 v9, s12, v9
            s_lshl_b32 s79, s{sD}, 12
            s_add_u32 m0, s{sCR}, {HE+32}
            v_mov_b32 v12, 0
            v_mov_b32 v13, 0""")
        for i in range(4): a.vmem(f"buffer_load_dwordx4 v8, s[{rSK}:{rSK+3}], s79 offen offset:{1024*i} lds", "he")
        a(f"s_add_u32 m0, s{sCR}, {HO+32}\ns_nop 0")
        for i in range(2): a.vmem(f"buffer_load_dwordx4 v9, s[{rSK}:{rSK+3}], s79 offen offset:{1024*i} lds", "he")
    def conv_pre2():
        for i in range(2, 4): a.vmem(f"buffer_load_dwordx4 v9, s[{rSK}:{rSK+3}], s79 offen offset:{1024*i} lds", "he")
        a(f"""v_lshlrev_b32 v10, 3, v1
            v_add_u32 v10, s{sCR}, v10
            ds_write_b64 v10, v[12:13] offset:{XR+4096}
            v_and_b32 v11, 3, v1
            v_lshlrev_b32 v11, 3, v11
            v_add_u32 v11, s{sCR}, v11
            ds_write_b64 v11, v[12:13] offset:{HE}
            ds_write_b64 v11, v[12:13] offset:{HO}
            ds_read_b32 v152, v{vCT} offset:{F_S1-CTRL}
            s_add_u32 s79, s79, {KVR}""")
    def xr_issue():
        a(f"s_add_u32 m0, s{sCR}, {XR}\ns_nop 0")
        for i in range(4): a(f"buffer_load_dwordx4 v8, s[{rWS}:{rWS+3}], s79 offen offset:{1024*i} sc1 lds")
    def conv_xr():
        a("s_waitcnt lgkmcnt(0)\nv_readfirstlane_b32 s94, v152\ns_cmp_eq_u32 s94, 0\ns_cbranch_scc1 L_xr_skip")
        xr_issue()
        a.label("L_xr_skip")
    aux_loop({'pre': conv_ids, 'post': s1_store, cfg.tconv: conv_pre, cfg.tconv+1: conv_pre2, NST-2: conv_xr})
    a("s_barrier")
    stamp(1)
    a(f"s_setprio {cfg.vprio}")
    a(f"s_cmp_eq_u32 s{sVal}, 0\ns_cbranch_scc1 L_end")
    a("s_cmp_lg_u32 s94, 0\ns_cbranch_scc1 L_xr_done")
    lds_spin(F_S1, 1, 148)
    xr_issue()
    a.label("L_xr_done")
    a("s_waitcnt vmcnt(4)")
    a(f"""v_mov_b32 v10, s{sCR}
        ds_read_b32 v11, v10 offset:{HE+32}
        s_waitcnt lgkmcnt(0)
        v_lshlrev_b32 v11, 16, v11
        ds_write_b32 v10, v11 offset:{HO+28}
        s_waitcnt vmcnt(0)""")
    def conv_reads(st, cp):
        base = cS[st]; out = []
        def rdA(C):
            o = (C&1)*128 + cp*16
            r = base+4*C
            return [f"ds_read2_b32 v[{r}:{r+1}], v{vA[C>>1]} offset0:{o} offset1:{o+1}",
                    f"ds_read2_b32 v[{r+2}:{r+3}], v{vA[C>>1]} offset0:{o+2} offset1:{o+3}"]
        def rdB(U):
            r = base+32+4*U
            return [f"ds_read_b128 v[{r}:{r+3}], v{vB} offset:{(7-U)*512+cp*64}"]
        out += rdA(0)
        for U in range(8): out += rdB(U)
        for C in range(1,8): out += rdA(C)
        return out
    def conv_mfmas(st):
        base = cS[st]; out = []
        for C in range(8):
            for J in range(C, 8):
                U = J-C
                out.append(f"v_mfma_f32_16x16x32_bf16 v[{cAcc+4*J}:{cAcc+4*J+3}], v[{base+4*C}:{base+4*C+3}], v[{base+32+4*U}:{base+32+4*U+3}], v[{cAcc+4*J}:{cAcc+4*J+3}]")
        return out
    if cfg.x_noconv: a("s_sleep 100\ns_sleep 100\ns_branch L_skipconv")
    if cfg.cpause >= 0: lds_spin(C_E, 4, 148)
    stamp(2)
    for l in conv_reads(0, 0): a(l)
    a("s_mov_b32 s11, 4")
    a.label("L_conv")
    for st in range(2):
        a("s_waitcnt lgkmcnt(0)")
        if st == 1:
            for v in vA + [vB]: a(f"v_add_u32 v{v}, 128, v{v}")
        rd = conv_reads(1-st, 1 if st == 0 else 0)
        mf = conv_mfmas(st)
        k = 0
        for i, m in enumerate(mf):
            a(m)
            for _ in range(cfg.cper):
                if k < len(rd): a(rd[k]); k += 1
    a("s_sub_u32 s11, s11, 1\ns_cmp_lg_u32 s11, 0\ns_cbranch_scc1 L_conv")
    a.label("L_skipconv")
    stamp(3)
    a("s_setprio 3\ns_waitcnt lgkmcnt(0)")
    for J in range(8): a(f"ds_read_b64 v[{64+2*J}:{65+2*J}], v{vE} offset:{(7-J)*512}")
    a(f"s_lshl_b32 s13, s{sD}, 12\ns_add_u32 s13, s13, {YTW}\ns_lshl_b32 s14, s{sD}, 2\ns_add_u32 s14, s14, {YFLAG}")
    for J in range(8):
        A = cAcc+4*J; K = 64+2*J; T = 96
        a(f"""s_waitcnt lgkmcnt({min(15, 7-J+J)})
            v_and_b32 v{T}, s{sMASK}, v{K+1}
            v_lshlrev_b32 v{T+1}, 16, v{K+1}
            v_and_b32 v{T+2}, s{sMASK}, v{K}
            v_lshlrev_b32 v{T+3}, 16, v{K}
            v_fmac_f32 v{A}, s{sDv}, v{T}
            v_fmac_f32 v{A+1}, s{sDv}, v{T+1}
            v_fmac_f32 v{A+2}, s{sDv}, v{T+2}
            v_fmac_f32 v{A+3}, s{sDv}, v{T+3}
            v_cvt_pk_bf16_f32 v{K}, v{A}, v{A+1}
            v_cvt_pk_bf16_f32 v{K+1}, v{A+2}, v{A+3}
            ds_write_b64 v22, v[{K}:{K+1}] offset:{512*J}""")
    a("s_waitcnt lgkmcnt(0)")
    for i in range(4): a(f"ds_read_b128 v[{96+4*i}:{99+4*i}], v23 offset:{1024*i}")
    stamp(5)
    for i in range(4):
        a(f"s_waitcnt lgkmcnt({3-i})\nbuffer_store_dwordx4 v[{96+4*i}:{99+4*i}], v8, s[{rWS}:{rWS+3}], s13 offen offset:{1024*i} sc1")
    stamp(6)
    a("s_waitcnt vmcnt(0)")
    gflag(14, 12)
    stamp(4)
    stamp_store(10)
    a("s_endpgm")

    a.label("L_svc")
    a.vm = list(vm_common)
    pF=100
    def svc_init():
        srd(rM2, pGW, 1280)
        a(f"""v_mov_b32 v8, 0
            v_mov_b32 v9, 0
            v_mov_b32 v10, 0
            v_mov_b32 v11, 0
            s_mov_b64 exec, 1
            ds_write_b128 v{vCT}, v[8:11] offset:{F_S1-CTRL}
            ds_write_b128 v{vCT}, v[8:11]
            ds_write_b128 v{vCT}, v[8:11] offset:16
            s_mov_b64 exec, -1
            v_lshlrev_b32 v8, 4, v1
            s_mov_b32 m0, {GW}
            s_nop 0""")
        a.vmem(f"buffer_load_dwordx4 v8, s[{rM2}:{rM2+3}], 0 offen lds", "gw")
        a("s_mov_b64 exec, 0xffff")
        a.vmem(f"buffer_load_dwordx4 v8, s[{rM2}:{rM2+3}], 0 offen offset:1024 lds", "gw")
        a("s_mov_b64 exec, -1")
    def pt_addr():
        srd(rM1, pWD, 1966080)
        a(f"""s_mul_i32 s13, s{sRB64}, 3
        s_mul_i32 s91, s{sCB}, 160
        s_movk_i32 s12, 1280""")
        for n in range(8):
            a(f"""v_add_u32 v126, {64*n}, v1
            v_mul_u32_u24 v127, 6554, v126
            v_lshrrev_b32 v127, 16, v127
            v_mul_u32_u24 v128, 10, v127
            v_sub_u32 v128, v126, v128
            v_lshlrev_b32 v128, 4, v128
            v_lshrrev_b32 v129, 4, v127
            v_add_u32 v129, s13, v129
            v_and_b32 v130, 1, v129
            v_lshrrev_b32 v129, 1, v129
            v_lshlrev_b32 v129, 2, v129
            v_add_u32 v129, v129, v130
            v_bfe_u32 v130, v127, 3, 1
            v_lshl_add_u32 v129, v130, 1, v129
            v_and_b32 v127, 7, v127
            v_lshl_add_u32 v127, v129, 3, v127
            v_mad_u32_u24 v{104+n}, v127, s12, v128""")
    def pt_issue():
        a(f"s_mov_b32 m0, {PT}\ns_nop 0")
        for n in range(8):
            if n == 7: a("s_mov_b32 exec_hi, 0")
            a.vmem(f"buffer_load_dwordx4 v{104+n}, s[{rM1}:{rM1+3}], s91 offen lds", "pt")
            if n < 7: a(f"s_add_u32 m0, m0, 1024\ns_nop 0")
        a("s_mov_b32 exec_hi, -1")
    def pretile_addr():
        a(f"""v_bfe_u32 v115, v1, 4, 1
            v_bfe_u32 v116, v1, 2, 2
            v_lshl_add_u32 v116, v115, 2, v116
            v_mul_u32_u24 v116, 160, v116
            v_lshrrev_b32 v117, 5, v1
            v_lshl_add_u32 v116, v117, 5, v116
            v_and_b32 v112, 3, v1
            v_lshl_add_u32 v116, v112, 3, v116
            v_add_u32 v116, {PT}, v116
            v_and_b32 v112, 15, v1
            v_lshl_add_u32 v112, v115, 4, v112
            v_lshlrev_b32 v112, 4, v112
            v_lshl_add_u32 v112, v117, 10, v112
            v_cmp_gt_u32 vcc, 32, v1
            v_mov_b32 v113, {OOB}""")
        a("s_nop 0\nv_cndmask_b32 v113, v113, v112, vcc")
    def svc_pretile():
        if cfg.ptlate: a.vm_wait('pt')
        for m in range(3):
            for u in range(3):
                r = 64 + 4*(3*m+u)
                a(f"ds_read_b64_tr_b16 v[{r}:{r+1}], v116 offset:{m*2560+u*64}\nds_read_b64_tr_b16 v[{r+2}:{r+3}], v116 offset:{m*2560+u*64+1280}")
        a(f"s_mul_i32 s13, s{sRB64}, 3\ns_mul_i32 s14, s{sCB}, 48")
        a("s_waitcnt lgkmcnt(0)")
        for m in range(3):
            a(f"""s_add_u32 s11, s13, {m}
                s_lshr_b32 s12, s11, 1
                s_add_u32 s12, s12, s14
                s_mul_i32 s12, s12, 5120
                s_and_b32 s11, s11, 1
                s_lshl_b32 s11, s11, 9
                s_add_u32 s11, s11, s12
                s_add_u32 s11, s11, {WDT}
                s_add_u32 s12, s11, 4096""")
            for u in range(3):
                r = 64 + 4*(3*m+u)
                if cfg.x_nopt and (m, u) != (0, 0): continue
                if u < 2: a.vmem(f"buffer_store_dwordx4 v[{r}:{r+3}], v112, s[{rWS}:{rWS+3}], s11 offen offset:{2048*u} sc1", "stw" if cfg.ptlate else "st1")
                else:     a.vmem(f"buffer_store_dwordx4 v[{r}:{r+3}], v113, s[{rWS}:{rWS+3}], s12 offen sc1", "stw" if cfg.ptlate else "st1")
    def svc_poll():
        a(f"v_lshlrev_b32 v8, 3, v1\ns_lshl_b32 s79, s{sCB}, 9\ns_add_u32 s79, s79, {S1FLAG}")
        poll_issue(8, 79, 10, 2, "poll")
    def svc_check():
        a.vm_wait("poll")
        poll_cmp(10, 2)
        a("s_mov_b32 s94, 0\ns_cmp_eq_u64 vcc, 0\ns_cbranch_scc0 L_chk_no\ns_mov_b32 s94, 1")
        lds_set(F_S1, 1, 12)
        a.label("L_chk_no")
    def svc_pre(): svc_init(); a.vm.append("dma0"); a.vm.pop();
    def svc_pre2():
        svc_init()
        a.vm[-1] = "dma0"
        gate_setup()
        pretile_addr()
        if cfg.ptlate: pt_addr()
    def svc_check2():
        spin(8, 79, 10, 2, first_wait=wait_tag("poll"))
        lds_set(F_S1, 1, 12)
        a(f"""v_lshlrev_b32 v16, 4, v1
            v_add_u32 v17, 4096, v16
            s_mul_i32 s95, s{sCB}, {48*5120}
            s_add_u32 s95, s95, {WDT+5*5120}""")
    def wd_group(i):
        def f():
            for w in range(4):
                a(f"s_add_u32 s13, s95, {(12*w+i)*5120}\ns_mov_b32 m0, {GRP[i]+w*5120}\ns_nop 0")
                for nt in range(4):
                    a.vmem(f"buffer_load_dwordx4 v16, s[{rWS}:{rWS+3}], s13 offen offset:{1024*nt} sc1 lds", f"g{i}")
                a(f"s_mov_b32 m0, {GRP[i]+w*5120+4096}\ns_nop 0")
                a.vmem(f"buffer_load_dwordx4 v17, s[{rWS}:{rWS+3}], s13 offen sc1 lds", f"g{i}")
        return f
    assert not cfg.hrot and not cfg.ycoop
    def svc_wflag():
        a(f"s_lshl_b32 s11, s{sCB}, 5\ns_add_u32 s11, s11, s{sRB64}\ns_lshl_b32 s11, s11, 2\ns_add_u32 s92, s11, {WFLAG}")
        a.vm_wait("stw"); gflag(92, 160)
    sd = {'pre': svc_pre2, cfg.tpoll: svc_poll, cfg.tchk: svc_check2}
    def add(t, f): sd[t] = seq(sd[t], f) if t in sd else f
    if cfg.ptlate:
        assert cfg.gearly == 0
        add(cfg.tpt, pt_issue); add(cfg.tpt2, svc_pretile); add(cfg.tpt3, svc_wflag)
        def wpoll():
            a(f"v_and_b32 v8, 31, v1\nv_lshlrev_b32 v8, 2, v8\ns_lshl_b32 s79, s{sCB}, 7\ns_add_u32 s79, s79, {WFLAG}")
            poll_issue(8, 79, 10, 1, "wpoll")
        add(cfg.tpt4, wpoll)
    else: sd['post'] = svc_pretile
    early = [(16, 0), (18, 1), (19, 2)][:cfg.gearly]
    for t_, g_ in early: sd[t_] = wd_group(g_)
    aux_loop(sd, gate=True)
    a("s_barrier")
    if cfg.ptlate:
        spin(8, 79, 10, 1, first_wait=wait_tag("wpoll"))
    lds_set(F_WT, 1, 12)
    a(f"v_mov_b32 v12, 16\ns_mov_b64 exec, 1\nds_add_u32 v{vCT}, v12 offset:{C_H-CTRL}\ns_mov_b64 exec, -1")
    for i in range(cfg.gearly, 5):
        wd_group(i)()
        if i == cfg.gearly: a.vm_wait("gate"); lds_inc(C_G, 12)
    a("s_waitcnt vmcnt(0)")
    lds_set(F_WD, 1, 12)
    a("s_waitcnt lgkmcnt(0)")
    stamp(1)
    stamp_store(10)
    a("s_endpgm")

    a.label("L_comp")
    vWl = [24,25,26]; vWn = [[27,28,29],[30,31,32]]; vXb = [33,34]; vXn = [35,36]
    FS=[48,88]; ACC=160
    vL=2; vL4=4; vH=[5,6,7,8]; vHS=9; vG3=[10,11,12]; vP=13; vQ=14; vO=15; vY=16; vRR=[17,18,19]; vYo=20; vF=21; vGo=22; vGt=23; vF8=175
    sHi=[72,73,74,75]; sWi=[76,77,78,79]
    sHS=88; sHF=89; sHo=90; sWo=91; sPV=92; sRC=93; sGA=94; sW25=95; sHP=96; sYP=97; sYo=98; sNL=99; sHS2=87
    def comp_setup():
        a(f"""v_lshrrev_b32 v158, 4, v1
        v_bfe_u32 v159, v1, 2, 2
        v_lshl_add_u32 v159, v158, 3, v159
        v_mul_u32_u24 v159, 192, v159
        v_and_b32 v46, 3, v1
        v_lshl_add_u32 v159, v46, 3, v159
        v_and_b32 v47, 1, v158
        s_and_b32 s13, s{sWAVE}, 1
        s_add_u32 s11, s13, 2
        v_xor_b32 v46, s11, v47
        v_lshl_add_u32 v{vWl[0]}, v46, 5, v159
        s_lshl_b32 s11, s13, 2
        v_xor_b32 v46, s11, v47
        v_lshl_add_u32 v{vWl[1]}, v46, 5, v159
        s_add_u32 s11, s11, 1
        v_xor_b32 v46, s11, v47
        v_lshl_add_u32 v{vWl[2]}, v46, 5, v159
        v_and_b32 v46, 31, v1
        v_lshlrev_b32 v{vF}, 2, v46
        v_and_b32 v46, 15, v1
        v_bfe_u32 v47, v1, 1, 3
        v_xor_b32 v47, v47, v158
        v_lshlrev_b32 v47, 4, v47
        v_lshl_add_u32 v47, v46, 7, v47
        s_lshr_b32 s11, s{sWAVE}, 1
        s_lshl_b32 s11, s11, 13
        s_add_u32 s11, s11, {XB}
        v_add_u32 v{vXb[0]}, s11, v47
        v_xor_b32 v{vXb[1]}, 64, v{vXb[0]}
        v_lshlrev_b32 v{vGo}, 2, v46
        s_lshl_b32 s11, s{sWAVE}, 10
        s_add_u32 s11, s11, {EX}
        v_lshlrev_b32 v{vHS}, 3, v1
        v_add_u32 v{vHS}, s11, v{vHS}
        v_lshlrev_b32 v{vL}, 4, v1
        v_add_u32 v{vL4}, 4096, v{vL}
        s_mul_i32 s{sPV}, s{sWAVE}, 5120
        s_mul_i32 s{sW25}, s{sWAVE}, 2560
        v_add_u32 v{vP}, s{sPV}, v{vL}
        v_mul_u32_u24 v47, 160, v46
        v_lshrrev_b32 v134, 4, v1
        v_lshl_add_u32 v47, v134, 3, v47
        v_add_u32 v{vO}, s{sPV}, v47
        s_add_u32 s11, s{sW25}, {QT}
        v_add_u32 v{vQ}, s11, v47
        v_lshlrev_b32 v47, 3, v1
        v_add_u32 v{vY}, s{sPV}, v47
        v_lshrrev_b32 v47, {3 if cfg.ycoop else 1}, v1
        v_and_b32 v134, {7 if cfg.ycoop else 1}, v1
        v_lshlrev_b32 v134, 4, v134
        v_lshl_add_u32 v{vYo}, v47, 12, v134
        s_lshr_b32 s11, s{sWAVE}, 1
        s_lshl1_add_u32 s11, s{sRB128}, s11
        s_mul_i32 s12, s11, {48*4096}
        s_mul_i32 s13, s{sFB}, {3*4096}
        s_add_u32 s12, s12, s13
        s_and_b32 s13, s{sWAVE}, 1
        s_add_u32 s12, s12, {HT}
        s_lshl_b32 s14, s13, 13
        s_add_u32 s{sHS}, s12, s14
        s_lshl_b32 s14, s13, 11
        s_add_u32 s{sHS2}, s12, s14
        s_add_u32 s{sHS2}, s{sHS2}, 4096
        s_lshl_b32 s11, s11, 7
        s_lshl3_add_u32 s11, s{sFB}, s11
        s_lshl2_add_u32 s11, s13, s11
        s_add_u32 s{sHF}, s11, {HFLAG}
        s_mov_b32 s{sNL}, 0xbfb8aa3b
        s_mul_i32 s11, s{sWAVE}, 12
        s_mul_i32 s12, s{sCB}, 48
        s_add_u32 s12, s12, s11
        s_mul_i32 s{sWo}, s12, 5120
        s_add_u32 s{sWo}, s{sWo}, {WDT}
        s_mul_i32 s12, s{sRB64}, 48
        s_add_u32 s12, s12, s11
        s_lshl_b32 s{sHo}, s12, 12
        s_add_u32 s{sHo}, s{sHo}, {HT}
        s_lshl2_add_u32 s11, s{sRB64}, s{sWAVE}
        s_mul_i32 s{sRC}, s11, {16*1280}
        s_mul_i32 s12, s{sCB}, 160
        s_add_u32 s{sRC}, s{sRC}, s12
        s_lshl_b32 s{sGA}, s11, 6
        s_add_u32 s{sGA}, s{sGA}, {GATE}
        s_lshl_b32 s{sYo}, s11, 5
        s_mul_i32 s12, s{sCB}, {80*4096}
        s_add_u32 s{sYo}, s{sYo}, s12
        s_add_u32 s{sYo}, s{sYo}, {YTW}
        s_lshl_b32 s{sHP}, s{sRB64}, 7
        s_add_u32 s{sHP}, s{sHP}, {HFLAG}
        s_mul_i32 s{sYP}, s{sCB}, 320
        s_add_u32 s{sYP}, s{sYP}, {YFLAG}""")
        if cfg.ycoop:
            a(f"""s_mul_i32 s11, s{sWAVE}, 80
            s_add_u32 s{sYP}, s{sYP}, s11
            s_lshl_b32 s{sYo}, s{sRB64}, 7
            s_mul_i32 s12, s{sCB}, {80*4096}
            s_add_u32 s{sYo}, s{sYo}, s12
            s_mul_i32 s12, s{sWAVE}, {20*4096}
            s_add_u32 s{sYo}, s{sYo}, s12
            s_add_u32 s{sYo}, s{sYo}, {YTW}""")
        for m in range(4):
            a(f"s_add_u32 s11, s{sRot}, {m}\ns_and_b32 s11, s11, 3\ns_mul_i32 s12, s11, {3*4096}\ns_add_u32 s{sHi[m]}, s{sHo}, s12\ns_mul_i32 s12, s11, {3*5120}\ns_add_u32 s{sWi[m]}, s{sWo}, s12")
            a(f"s_add_u32 s11, s{sWAVE}, {m}\ns_and_b32 s11, s11, 3\ns_lshl_b32 s12, s11, 10\nv_add_u32 v{vH[m]}, s12, v{vL}")
            if m: a(f"s_sub_u32 s11, s{sWAVE}, {m}\ns_and_b32 s11, s11, 3\ns_mul_i32 s11, s11, 5120\ns_add_u32 s11, s11, {GRP[m]}\nv_add_u32 v{vRR[m-1]}, s11, v{vL}")
        for n in range(3):
            a(f"""v_add_u32 v158, {64*n}, v1
            v_mul_u32_u24 v159, 6554, v158
            v_lshrrev_b32 v159, 16, v159
            v_mul_u32_u24 v46, 10, v159
            v_sub_u32 v46, v158, v46
            v_lshlrev_b32 v46, 4, v46
            v_mul_u32_u24 v159, 1280, v159
            v_add_u32 v{vG3[n]}, v159, v46""")
        a(f"v_cmp_gt_u32 vcc, 32, v1\nv_mov_b32 v158, {OOB}\ns_nop 0\nv_cndmask_b32 v{vG3[2]}, v158, v{vG3[2]}, vcc")
    a("s_waitcnt lgkmcnt(0)")
    stamp(8)
    if cfg.wsoff: a(f"s_add_u32 s{pWS}, s{pWS}, {cfg.wsoff}\ns_addc_u32 s{pWS+1}, s{pWS+1}, 0")
    a(f"s_load_dword s{sTAG}, s[{pWS}:{pWS+1}], {EPOCH}")
    a(f"s_cmp_eq_u32 s{sWAVE}, 3\ns_cbranch_scc1 L_nos1")
    a.vm_reset()
    srd(rM1, pK, 2621440); srd(rM2, pV, 2621440); srd(rM3, pSH, 5120)
    a(f"""s_lshl_b32 s11, s{sWAVE}, 6
        v_add_u32 v158, s11, v1
        v_mul_u32_u24 v159, 3277, v158
        v_lshrrev_b32 v159, 16, v159
        v_mul_u32_u24 v46, 20, v159
        v_sub_u32 v46, v158, v46
        s_mul_i32 s11, s{sRB64}, 81920
        s_mul_i32 s12, s{sCB}, 160
        s_add_u32 s11, s11, s12
        v_mul_u32_u24 v{vK0}, 10240, v159
        v_lshl_add_u32 v{vK0}, v46, 3, v{vK0}
        v_add_u32 v{vK0}, s11, v{vK0}
        s_lshl_b32 s12, s12, 2
        v_lshlrev_b32 v{vSh}, 5, v46
        v_add_u32 v{vSh}, s12, v{vSh}
        v_cmp_gt_u32 vcc, 160, v158
        v_mov_b32 v47, {OOB}
        v_mul_u32_u24 v{vT1}, 576, v46
        v_cndmask_b32 v{vK0}, v47, v{vK0}, vcc
        v_subrev_u32 v{vKh}, 3840, v{vK0}
        v_add_u32 v{vK1}, 5120, v{vK0}""")
    a.vmem(f"buffer_load_dwordx4 v[{vSw}:{vSw+3}], v{vSh}, s[{rM3}:{rM3+3}], 0 offen", "sw")
    a.vmem(f"buffer_load_dwordx4 v[{vSw+4}:{vSw+7}], v{vSh}, s[{rM3}:{rM3+3}], 0 offen offset:16", "sw")
    for r in range(11):
        base, off = (vKh, r*1280) if r < 3 else ((vK0, (r-3)*1280) if r < 7 else (vK1, (r-7)*1280))
        if cfg.x_nos1 and r > 0: a.vm.append(f"k{r}"); continue
        a.vmem(f"buffer_load_dwordx2 v[{vK+2*r}:{vK+2*r+1}], v{base}, s[{rM1}:{rM1+3}], 0 offen offset:{off}", f"k{r}")
    for r in range(8):
        base, off = (vK0, r*1280) if r < 4 else (vK1, (r-4)*1280)
        if cfg.x_nos1: a.vm.append(f"v{r}"); continue
        a.vmem(f"buffer_load_dwordx2 v[{vV+2*r}:{vV+2*r+1}], v{base}, s[{rM2}:{rM2+3}], 0 offen offset:{off}", f"v{r}")
    a(f"""v_lshlrev_b32 v159, 4, v159
        v_sub_u32 v{vT1}, v{vT1}, v159
        v_add_u32 v{vT1}, {T1+112}, v{vT1}
        v_mov_b32 v47, {DUMMY}
        v_cndmask_b32 v{vT1}, v47, v{vT1}, vcc""")
    comp_setup()
    for i in range(96): a(f"v_mov_b32 v{ACC+i}, 0")
    stamp(15)
    a.vm_wait("sw")
    for p in range(2):
        for cc in range(2):
            c = 2*p+cc
            unpack(64+8*p+0+cc, 64+8*p+2+cc, vSw+2*c); unpack(64+8*p+4+cc, 64+8*p+6+cc, vSw+2*c+1)
    for r in range(11):
        a.vm_wait(f"k{r}")
        for p in range(2): unpack(80+22*p+2*r, 80+22*p+2*r+1, vK+2*r+p)
        if r >= 3:
            rr = r - 3
            for p in range(2):
                A = 80+22*p+2*rr; W = 64+8*p
                a(f"v_pk_mul_f32 v[{A}:{A+1}], v[{A}:{A+1}], v[{W+6}:{W+7}]")
                for jj in (2,1,0):
                    kr = 80+22*p+2*(rr+3-jj)
                    a(f"v_pk_fma_f32 v[{A}:{A+1}], v[{kr}:{kr+1}], v[{W+2*jj}:{W+2*jj+1}], v[{A}:{A+1}]")
    stamp(11)
    for r in range(8):
        a.vm_wait(f"v{r}")
        for p in range(2):
            A = 80+22*p+2*r
            unpack(124, 125, vV+2*r+p)
            a(f"v_pk_mul_f32 v[{A}:{A+1}], v[{A}:{A+1}], v[124:125]")
    for p in range(2):
        for cc in range(2):
            O = 136 + 8*p + 4*cc
            for m in range(4):
                a(f"v_cvt_pk_bf16_f32 v{O+m}, v{80+22*p+2*(7-2*m)+cc}, v{80+22*p+2*(6-2*m)+cc}")
            a(f"ds_write_b128 v{vT1}, v[{O}:{O+3}] offset:{(2*p+cc)*144}")
    a("s_waitcnt lgkmcnt(0)\ns_branch L_s1done")
    a.label("L_nos1")
    if not cfg.ptlate: pt_addr(); pt_issue()
    comp_setup()
    for i in range(96): a(f"v_mov_b32 v{ACC+i}, 0")
    stamp(15); stamp(11)
    a.label("L_s1done")
    stamp(14)
    srd(rWS, pWS, WS_SIZE)
    srd(rX, pQ, 2621440)
    def g1_reads(st, w, x):
        b = FS[st]; out = [f"ds_read_b128 v[{b+24}:{b+27}], v{x}"]
        for l in range(3):
            for mat in range(2):
                r = b + (l*2+mat)*4
                out.append(f"ds_read_b64_tr_b16 v[{r}:{r+1}], v{w[l]} offset:{mat*6144}")
                out.append(f"ds_read_b64_tr_b16 v[{r+2}:{r+3}], v{w[l]} offset:{mat*6144+768}")
        for t_ in range(1, 4): out.append(f"ds_read_b128 v[{b+24+4*t_}:{b+27+4*t_}], v{x} offset:{2048*t_}")
        return out
    accr = lambda l, mat, t_: ACC + ((l*2+mat)*4 + t_)*4
    def g1_mfmas(st):
        b = FS[st]; out = []
        idx = [(t_, l, mat) for t_ in range(4) for l in range(3) for mat in range(2)]
        if cfg.g1ord == 1: idx = [(t_, l, mat) for l in range(3) for mat in range(2) for t_ in range(4)]
        if cfg.g1ord == 2: idx = [((t_ if (l*2+mat) % 2 == 0 else 3-t_), l, mat) for l in range(3) for mat in range(2) for t_ in range(4)]
        for (t_, l, mat) in idx:
                    r = b + (l*2+mat)*4; c = accr(l, mat, t_)
                    out.append(f"v_mfma_f32_16x16x32_bf16 v[{c}:{c+3}], v[{r}:{r+3}], v[{b+24+4*t_}:{b+27+4*t_}], v[{c}:{c+3}]")
        return out
    a("s_waitcnt vmcnt(0)")
    mk_tag()
    if cfg.cprio: a(f"s_setprio {cfg.cprio}")
    a("s_barrier")
    stamp(1); rstamp(59)
    for l in g1_reads(0, vWl, vXb[0]): a(l)
    sSB=68; sIT=69; sXS=70
    a(f"""s_mov_b32 s{sSB}, {WSL}
        s_mov_b32 s{sXS}, 0
        s_mov_b32 s{sIT}, {NST//2}
        s_mov_b32 m0, 16
        v_add_u32 v{vWn[0][0]}, s{sSB}, v{vWl[0]}
        v_add_u32 v{vWn[0][1]}, s{sSB}, v{vWl[1]}
        v_add_u32 v{vWn[0][2]}, s{sSB}, v{vWl[2]}
        v_mov_b32 v{vXn[0]}, v{vXb[1]}
        s_waitcnt lgkmcnt(0)""")
    a.label("L_g1")
    def g1_addr(st):
        out = [f"s_add_u32 s{sSB}, s{sSB}, {WSL}", f"s_cmp_eq_u32 s{sSB}, {R*WSL}", f"s_cselect_b32 s{sSB}, 0, s{sSB}"]
        out += [f"v_add_u32 v{vWn[st][l]}, s{sSB}, v{vWl[l]}" for l in range(3)]
        if st == 1: out += [f"s_add_u32 s{sXS}, s{sXS}, {XSL}", f"s_and_b32 s{sXS}, s{sXS}, {NX*XSL-1}"]
        out += [f"v_add_u32 v{vXn[st]}, s{sXS}, v{vXb[1-st]}"]
        return out
    need = []
    for t_ in range(4):
        for l in range(3):
            for mat in range(2): need.append(max((l*2+mat)*2 + 2, 0 if t_ == 0 else 12 + t_))
    for st in range(2):
        ops = g1_reads(1-st, vWn[st], vXn[st]); mf = g1_mfmas(st)
        ad = g1_addr(1-st)
        k = 0; covered = -1
        for i_, m in enumerate(mf):
            nd = need[i_]
            if cfg.g1one: nd = 15
            if nd > covered:
                n = (15 - nd) + k
                if n <= 15: a(f"s_waitcnt lgkmcnt({n})"); covered = nd
                else: a("s_waitcnt lgkmcnt(15)"); covered = 15 + k - 15
            a(m)
            if i_ == 0:
                stamp(0, 70)
                if cfg.stamps == 2: a("s_add_u32 m0, m0, 1")
                a("s_barrier")
            else:
                for _ in range(cfg.g1per):
                    if k < len(ops): a(ops[k]); k += 1
                if k == len(ops) and i_ >= 17 and ad: a(ad.pop(0));
                if k == len(ops) and i_ >= 17 and ad and i_ < 20: a(ad.pop(0))
        assert k == len(ops) and not ad, (k, ad)
    a(f"s_sub_u32 s{sIT}, s{sIT}, 1\ns_cmp_lg_u32 s{sIT}, 0\ns_cbranch_scc1 L_g1")
    stamp(2); rstamp(61)
    a(f"s_setprio {cfg.eprio}\ns_waitcnt lgkmcnt(0)\ns_barrier")
    WS_=[48+20*i for i in range(5)]; AC2=176
    HSL=[[24,28,32,36],[148,152,156,160],[40,44,164,168]]
    vT=172; vP2=175
    a.vm_reset()
    def ld_wd(step):
        b = wslot[step]
        a(f"s_add_u32 s13, s{sWi[step // 3]}, {(step % 3)*5120}")
        for nt in range(5):
            a.vmem(f"buffer_load_dwordx4 v[{b+4*nt}:{b+4*nt+3}], v{vL if nt<4 else vL4}, s[{rWS}:{rWS+3}], s13 offen offset:{1024*(nt&3)} sc1", f"w{step}")
    def ld_h(step):
        hs = HSL[step % 3]
        a(f"s_add_u32 s13, s{sHi[step // 3]}, {(step % 3)*4096}")
        for m in range(4):
            a.vmem(f"buffer_load_dwordx4 v[{hs[m]}:{hs[m]+3}], v{vH[m]}, s[{rWS}:{rWS+3}], s13 offen sc1", f"h{step}")
    wslot = {s_: WS_[s_] for s_ in range(5)}
    wslot.update({5: WS_[0], 6: WS_[1], 7: WS_[0], 8: WS_[1], 9: WS_[0], 10: WS_[2], 11: WS_[3]})
    def hflag(c):
        a.vm_wait(f"hst{c}")
        gflag(sHF, 148)
        a(f"s_add_u32 s{sHF}, s{sHF}, 0x1000")
    def sig_mul(l, ts):
        es = [(accr(l, 0, t_) + r, accr(l, 1, t_) + r) for t_ in ts for r in range(4)]
        for g, u in es: a(f"v_mul_f32 v{g}, s{sNL}, v{g}")
        for g, u in es: a(f"v_exp_f32 v{g}, v{g}")
        for g, u in es: a(f"v_add_f32 v{g}, 1.0, v{g}")
        for g, u in es: a(f"v_rcp_f32 v{g}, v{g}")
        for g, u in es: a(f"v_mul_f32 v{g}, v{g}, v{u}")
    def pack(dst, l, t_):
        g = accr(l, 0, t_)
        a(f"v_cvt_pk_bf16_f32 v{dst}, v{g}, v{g+1}\nv_cvt_pk_bf16_f32 v{dst+1}, v{g+2}, v{g+3}")
    PX = CTRL + 16
    def xsend():
        a(f"s_bitcmp1_b32 s{sWAVE}, 0\ns_cbranch_scc1 L_xa1")
        pack(40, 0, 0); pack(44, 0, 1); pack(148, 0, 2); pack(150, 0, 3)
        a("s_branch L_xa2")
        a.label("L_xa1")
        pack(42, 0, 2); pack(46, 0, 3); pack(148, 0, 0); pack(150, 0, 1)
        a.label("L_xa2")
        a(f"""ds_write_b64 v{vHS}, v[148:149]
        ds_write_b64 v{vHS}, v[150:151] offset:512
        s_lshr_b32 s11, s{sWAVE}, 1
        s_lshl_b32 s11, s11, 2
        v_add_u32 v152, s11, v{vCT}
        v_mov_b32 v153, 1
        v_xor_b32 v{vHS}, 0x400, v{vHS}
        s_mov_b64 exec, 1
        ds_add_u32 v152, v153 offset:{PX-CTRL}
        s_mov_b64 exec, -1""")
        stamp(12)
    if not cfg.epipe: sig_mul(0, (0, 1)); sig_mul(0, (2, 3)); xsend()
    if cfg.wepi: lds_spin(F_WT, 1, 154)
    for i in range(cfg.wepi): ld_wd(i)
    def xrecv(sfx=""):
        a(f"""ds_read_b32 v153, v152 offset:{PX-CTRL}
            s_bitcmp1_b32 s{sWAVE}, 0
            s_cbranch_scc1 L_xb1{sfx}
            ds_read_b64 v[42:43], v{vHS}
            ds_read_b64 v[46:47], v{vHS} offset:512
            s_branch L_xb2{sfx}""")
        a.label("L_xb1" + sfx)
        a(f"ds_read_b64 v[40:41], v{vHS}\nds_read_b64 v[44:45], v{vHS} offset:512")
        a.label("L_xb2" + sfx)
    def xcheck():
        a(f"s_mov_b32 s12, {cfg.spin_max*16}\ns_branch L_xchk")
        a.label("L_xs")
        xrecv("r")
        a.label("L_xchk")
        a(f"""s_waitcnt lgkmcnt(0)
            v_readfirstlane_b32 s11, v153
            s_sub_u32 s12, s12, 1
            s_cselect_b32 s11, 2, s11
            s_cmp_lt_u32 s11, 2
            s_cbranch_scc1 L_xs""")
    def st_p(t_):
        if cfg.x_nost and t_ < 3: return
        a.vmem(f"buffer_store_dwordx4 v[{24+4*t_}:{27+4*t_}], v{vL}, s[{rWS}:{rWS+3}], s{sHS} offen offset:{1024*t_} sc1", "hst0")
    def st_s():
        xcheck()
        for t_ in range(2):
            a.vmem(f"buffer_store_dwordx4 v[{40+4*t_}:{43+4*t_}], v{vL}, s[{rWS}:{rWS+3}], s{sHS2} offen offset:{1024*t_} sc1", "hst0")
    def sig_mul2(t_):
        es = [(accr(l, 0, t_) + r, accr(l, 1, t_) + r) for l in (1, 2) for r in range(4)]
        for g, u in es: a(f"v_mul_f32 v{g}, s{sNL}, v{g}")
        for g, u in es: a(f"v_exp_f32 v{g}, v{g}")
        for g, u in es: a(f"v_add_f32 v{g}, 1.0, v{g}")
        for g, u in es: a(f"v_rcp_f32 v{g}, v{g}")
        for g, u in es: a(f"v_mul_f32 v{g}, v{g}, v{u}")
        pack(24 + 4*t_, 1, t_); pack(26 + 4*t_, 2, t_)
    if cfg.epipe:
        els = [(accr(0, 0, t_) + r, accr(0, 1, t_) + r) for t_ in range(4) for r in range(4)]
        els += [(accr(l, 0, t_) + r, accr(l, 1, t_) + r) for t_ in range(4) for l in (1, 2) for r in range(4)]
        N = len(els)
        def post(i):
            if i == 15: xsend()
            if i >= 16 and (i - 16) % 8 == 7:
                t_ = (i - 16) // 8
                pack(24 + 4*t_, 1, t_); pack(26 + 4*t_, 2, t_)
                st_p(t_)
                if t_ == 0: xrecv()
                if t_ == 1: stamp(13)
                if t_ == cfg.xst: st_s()
        for i in range(2): a(f"v_mul_f32 v{els[i][0]}, s{sNL}, v{els[i][0]}")
        for i in range(N + 5):
            if i < N: a(f"v_exp_f32 v{els[i][0]}, v{els[i][0]}")
            if i + 2 < N: a(f"v_mul_f32 v{els[i+2][0]}, s{sNL}, v{els[i+2][0]}")
            if 0 <= i - 2 < N: a(f"v_add_f32 v{els[i-2][0]}, 1.0, v{els[i-2][0]}")
            if 0 <= i - 3 < N: a(f"v_rcp_f32 v{els[i-3][0]}, v{els[i-3][0]}")
            if 0 <= i - 5 < N:
                a(f"v_mul_f32 v{els[i-5][0]}, v{els[i-5][0]}, v{els[i-5][1]}")
                post(i - 5)
    elif cfg.prog:
        for t_ in range(4):
            sig_mul2(t_)
            if t_ == cfg.cpause: lds_inc(C_E, 154)
            st_p(t_)
            if t_ == 1: xrecv(); stamp(13)
            if t_ == 2: st_s()
    else:
        for t_ in range(4):
            sig_mul2(t_)
            if t_ == 1: stamp(13)
        xrecv()
        for t_ in range(4): st_p(t_)
        st_s()
    stamp(3)
    for i in range(80): a(f"v_mov_b32 v{AC2+i}, 0")
    lds_spin(C_G, 1, 148)
    hflag(0)
    stamp(7); rstamp(62)
    lds_inc(C_H, 150)
    lds_spin(C_H, 20, 150)
    for i in range(cfg.wepi, cfg.wmid): ld_wd(i)
    poll_issue(vF, sHP, vT, 1, "pA")
    for i in range(cfg.wmid, 5): ld_wd(i)
    for n in range(3):
        a(f"s_add_u32 m0, s{sW25}, {QT+1024*n}\n" + ("s_mov_b32 exec_hi, 0" if n == 2 else "s_nop 0"))
        a.vmem(f"buffer_load_dwordx4 v{vG3[n]}, s[{rX}:{rX+3}], s{sRC} offen lds", "q")
    a("s_mov_b32 exec_hi, -1")
    spin(vF, sHP, vT, first_wait=wait_tag("pA"))
    stamp(4); rstamp(58)
    for s_ in range(3): ld_h(s_)
    a.vmem(f"buffer_load_dword v{vGt}, v{vGo}, s[{rWS}:{rWS+3}], s{sGA} offen sc1", "gate")
    a(f"v_min_u32 v{vF}, {9 if cfg.ycoop else 39}, v1\nv_lshlrev_b32 v{vF}, 3, v{vF}")
    def rd_wd(s_):
        b = wslot[s_]
        g = GRP[s_-5]
        return [f"ds_read_b128 v[{b+4*nt}:{b+4*nt+3}], v{vP if g < 65536 else vP2} offset:{(g & 0xffff)+nt*1024}" for nt in range(5)]
    Yr = WS_[4]; Qr = WS_[4] + 10; GA = WS_[0]; TT = WS_[1]
    ga_code = []
    for i in range(10):
        t = TT + 4*(i & 3)
        ga_code += [f"v_lshlrev_b32 v{t}, 16, v{Yr+i}", f"v_and_b32 v{t+1}, s{sMASK}, v{Yr+i}",
                    f"v_lshlrev_b32 v{t+2}, 16, v{Qr+i}", f"v_and_b32 v{t+3}, s{sMASK}, v{Qr+i}",
                    f"v_mul_f32 v{t}, v{t}, v{t+2}", f"v_mul_f32 v{t+1}, v{t+1}, v{t+3}",
                    f"v_mul_f32 v{GA+2*i}, v{t}, v{vT}", f"v_mul_f32 v{GA+2*i+1}, v{t+1}, v{vT}"]
    for step in range(12):
        hs = HSL[step % 3]; wb = wslot[step]
        a.vm_wait(f"h{step}")
        if step >= 10 or cfg.wmid <= step <= 4: a.vm_wait(f"w{step}")
        if 5 <= step <= 9: a("s_waitcnt lgkmcnt(0)")
        stamp(40+step)
        if step == 4: lds_spin(F_WD, 1, 175); a(f"v_add_u32 v{vP2}, 0x10000, v{vP}")
        fill = rd_wd(step+1) if 5 <= step+1 <= 9 else []
        per = 1
        if step == 10:
            a.vm_wait("y")
            if cfg.ycoop: lds_inc(C_Y, 174); lds_spin(C_Y, 4, 174)
            for nt in range(5): a(f"ds_read_b64_tr_b16 v[{Yr+2*nt}:{Yr+2*nt+1}], v{vY} offset:{GRP[0]+nt*512}")
            for nt in range(5): a(f"ds_read_b64 v[{Qr+2*nt}:{Qr+2*nt+1}], v{vQ} offset:{nt*32}")
            fill = [f"v_lshlrev_b32 v{vT}, 16, v{vGt}", f"v_and_b32 v{vT+1}, s{sMASK}, v{vGt}"] + ["s_nop 0"]*6 + ["s_waitcnt lgkmcnt(0)"] + ga_code[:31]
            per = 2
        if step == 11: fill = ga_code[31:]; per = 3
        i = 0
        for m in range(4):
            for nt in range(5):
                c = AC2 + (m*5+nt)*4
                a(f"v_mfma_f32_16x16x32_bf16 v[{c}:{c+3}], v[{wb+4*nt}:{wb+4*nt+3}], v[{hs[m]}:{hs[m]+3}], v[{c}:{c+3}]")
                for _ in range(per):
                    if i < len(fill): a(fill[i]); i += 1
        assert i == len(fill)
        if step + 3 < 12: ld_h(step+3)
        if step in (2, 3): ld_wd(step+8)
        if step == cfg.ystep - 2: poll_issue(vF, sYP, vT, 2, "ypoll")
        if step == cfg.ystep:
            spin(vF, sYP, vT, 2, first_wait=wait_tag("ypoll"))
            stamp(9)
            for n in range(3):
                a(f"s_add_u32 m0, s{sPV}, {GRP[0]+1024*n}\n" + ("s_mov_b32 exec_hi, 0" if n == 2 else "s_nop 0"))
                a.vmem(f"buffer_load_dwordx4 v{vYo}, s[{rWS}:{rWS+3}], s{sYo} offen sc1 lds", "y")
                if n < 2: a(f"s_add_u32 s{sYo}, s{sYo}, {(8 if cfg.ycoop else 32)*4096}")
            a("s_mov_b32 exec_hi, -1")
    stamp(5); rstamp(57)
    srd(rM1, pOUT, 2621440)
    a("s_nop 4")
    for m in range(1, 4):
        for nt in range(5):
            c = AC2 + (m*5+nt)*4
            a(f"ds_write_b128 v{vP if GRP[m] < 65536 else vP2}, v[{c}:{c+3}] offset:{(GRP[m] & 0xffff)+nt*1024}")
    a("s_waitcnt lgkmcnt(0)\ns_barrier")
    P=88
    for nt in range(5):
        for sl in range(3):
            r = P + (nt*3+sl)*4
            a(f"ds_read_b128 v[{r}:{r+3}], v{vRR[sl]} offset:{nt*1024}")
    a(f"v_mov_b32 v{vT}, v{vT+1}")
    for nt in range(5):
        c = AC2 + nt*4
        a(f"s_waitcnt lgkmcnt({12-3*nt+nt})")
        for sl in range(3):
            r = P + (nt*3+sl)*4
            a(f"v_pk_add_f32 v[{c}:{c+1}], v[{c}:{c+1}], v[{r}:{r+1}]\nv_pk_add_f32 v[{c+2}:{c+3}], v[{c+2}:{c+3}], v[{r+2}:{r+3}]")
        for h in range(2):
            x = c + 2*h
            a(f"v_pk_fma_f32 v[{x}:{x+1}], v[{x}:{x+1}], v[{vT}:{vT+1}], v[{GA+4*nt+2*h}:{GA+4*nt+2*h+1}]")
        a(f"v_cvt_pk_bf16_f32 v{c}, v{c}, v{c+1}\nv_cvt_pk_bf16_f32 v{c+1}, v{c+2}, v{c+3}")
        a(f"ds_write_b64 v{vO}, v[{c}:{c+1}] offset:{GRP[4]+nt*32}")
    a("s_waitcnt lgkmcnt(0)")
    for n in range(3): a(f"ds_read_b128 v[{P+4*n}:{P+4*n+3}], v{vP} offset:{GRP[4]+1024*n}")
    for n in range(3):
        a(f"s_waitcnt lgkmcnt({2-n})\nbuffer_store_dwordx4 v[{P+4*n}:{P+4*n+3}], v{vG3[n]}, s[{rM1}:{rM1+3}], s{sRC} offen {cfg.ost}")
    stamp(6); rstamp(63)
    stamp_store(26)
    a(f"s_or_b32 s11, s2, s{sWAVE}\ns_cmp_lg_u32 s11, 0\ns_cbranch_scc1 L_end")
    a(f"s_mov_b32 s12, {cfg.spin_max}\ns_movk_i32 s11, {S1FLAG}")
    a.label("L_ep")
    for i in range(4): a(f"buffer_load_dwordx4 v[{24+4*i}:{27+4*i}], v{vL}, s[{rWS}:{rWS+3}], s11 offen offset:{1024*i} sc1")
    a("s_waitcnt vmcnt(0)")
    for i in range(16): a(f"v_xor_b32 v{24+i}, s{sTAG}, v{24+i}")
    for i in range(1, 16): a(f"v_or_b32 v24, v24, v{24+i}")
    a(f"""v_cmp_ne_u32 vcc, 0, v24
        s_sub_u32 s12, s12, 1
        s_cselect_b64 vcc, 0, vcc
        s_cmp_eq_u64 vcc, 0
        s_cbranch_scc0 L_ep
        v_mov_b32 v18, s{sTAG}
        v_mov_b32 v19, 0
        s_mov_b64 exec, 1
        buffer_store_dword v18, v19, s[{rWS}:{rWS+3}], 0 offen sc1""")
    a.label("L_end")
    a("s_endpgm")
    a.label("L_code_end")
    body = a.text()
    ref = open(f"cdna_kernels/{NAME}.s.ref").read()
    head = [l for l in ref.split("\n") if l.startswith(";") and "@launch" not in l]
    out = "\n".join(head) + f"\n; @launch grid=(256,1,1) block=(512,1,1) lds={LDS_BYTES}\n"
    out += f""".amdgcn_target "amdgcn-amd-amdhsa--gfx950"
.text
.globl {NAME}_kernel
.p2align 8
.type {NAME}_kernel,@function
{NAME}_kernel:
{body}.section .rodata,"a"
.p2align 6
.amdhsa_kernel {NAME}_kernel
  .amdhsa_next_free_vgpr 256
  .amdhsa_next_free_sgpr 102
  .amdhsa_accum_offset 256
  .amdhsa_group_segment_fixed_size 0
  .amdhsa_kernarg_size 112
  .amdhsa_user_sgpr_count 2
  .amdhsa_user_sgpr_kernarg_segment_ptr 1
  .amdhsa_system_sgpr_workgroup_id_x 1
.end_amdhsa_kernel
"""
    return out, body

if __name__ == "__main__":
    outp = sys.argv[1] if len(sys.argv) > 1 else "k.s"
    for kv in sys.argv[2:]:
        k, v = kv.split("="); setattr(cfg, k, eval(v))
    out, body = gen(cfg)
    errs = check_hazards(body)
    for e in errs: print("HAZARD", e)
    open(outp, "w").write(out)
    print("wrote", outp, len(out), "bytes;", len(errs), "hazards")
```

```python
import sys, re
from asmlib import *
NAME = "gated_mix__ssm_conv_h3__glu_gated_glu__prompt"
EPOCH=0; S1FLAG=0x1000; HFLAG=0x2000; YFLAG=0x6000; WFLAG=0x5000; GATE=0x8000; STAMP=0x10000
KVR=0x100000; WDT=0x400000; HT=0x600000; YTW=0xC00000; WS_SIZE=0x1000000
OOB = 0x80000000

class Cfg:
    stamps = 0
    spin_max = 1 << 16
    psleep = 6
    tflag = 4
    tpoll = 12
    tchk = 15
    tconv = 16
    pre_n = 4
    hrot = False
    bla = 5
    x_nobar = False
    x_nodma = False
    x_noread = False
    ystep = 8
    wepi = 0
    wmid = 5
    cper = 1
    wsoff = 0
    pairbar = False
    ycoop = False
    g1per = 2
    map48 = True
    gearly = 0
    krot = 0
    g1map = 0
    prog = True
    cpause = -1
    epipe = True
    xst = 1
    dbgout = False
    g1ord = 0
    x_noconv = False
    x_nost = False
    ptlate = True
    tpt = 6
    tpt2 = 9
    tpt3 = 13
    tpt4 = 17
    x_nopt = False
    x_nos1 = False
    g1one = True
    ost = ''
    vprio = 0
    eprio = 3
    g1spread = [2,3,2,3,2,3,2,3,2,2,2,0]
    cprio = 1
    la = 3
    lp = 2
    lsleep = 1
    aprio = 2
cfg = Cfg()

def gen(cfg):
    R = 6; WSL = 12288; XB = R*WSL; XSL = 16384; NX = 4
    CB = XB + 3*XSL
    HE=0; HO=4160; XR=8320; CSZ=12928
    T1 = XB + 4*XSL; PT = T1 + 11520; DUMMY = PT + 8192
    CTRL = CB + 3*CSZ + 128
    LAND=CTRL; CONS=CTRL+16; F_S1=CTRL+32; F_WD=CTRL+36; C_H=CTRL+40; C_G=CTRL+44; C_Y=CTRL+0; F_WT=CTRL+4; C_E=CTRL+8; CDUM=CTRL+64; GW=CTRL+384
    LDS_BYTES = 163840
    assert GW + 1280 + 256 <= LDS_BYTES and DUMMY + 600 <= CTRL
    GRP = [24576, 45056, 65536, 86016, 0]; QT = 106496; EX = 116736
    a = Asm()
    NST = 20
    sWAVE=3; sX=4; sJ=5; sRB128=6; sFB=7; sRB64=8; sCB=9; sTAG=10
    pQ,pK,pV,pSH,pSK,pSD,pBX,pWG,pWU,pWD,pGW,pOUT,pDBG,pWS = [16+2*i for i in range(14)]
    rWS=44; rX=48; rW=52; rM1=56; rM2=60; rM3=64; rSK=84
    sMASK=101
    sRot = sJ if cfg.hrot else 100
    def srd(r, p, size):
        a(f"s_mov_b64 s[{r}:{r+1}], s[{p}:{p+1}]\ns_mov_b32 s{r+2}, {size}\ns_mov_b32 s{r+3}, 0x20000")
    def stamp(k, sreg=None):
        if cfg.stamps == 2 or (cfg.stamps == 3 and sreg is None and k < 16):
            a(f"s_memtime s[80:81]\ns_waitcnt lgkmcnt(0)\nv_writelane_b32 v3, s80, {k if sreg is None else 'm0'}")
    def rstamp(k):
        if cfg.stamps:
            a(f"s_memrealtime s[80:81]\ns_waitcnt lgkmcnt(0)\nv_writelane_b32 v3, s80, {k}")
    def stamp_store(vtmp):
        if not cfg.stamps: return
        a(f"s_lshl_b32 s11, s2, 3\ns_add_u32 s11, s11, s{sWAVE}\ns_lshl_b32 s11, s11, 8\ns_add_u32 s11, s11, {STAMP}")
        a(f"v_lshlrev_b32 v{vtmp}, 2, v1\nbuffer_store_dword v3, v{vtmp}, s[{rWS}:{rWS+3}], s11 offen\ns_waitcnt vmcnt(0)")
    lab = [0]
    def newlab(p): lab[0] += 1; return f"L_{p}{lab[0]}"
    def poll_issue(voff, soff, vt, n, tag=None):
        op = {1: "dword", 2: "dwordx2"}[n]
        a.vmem(f"buffer_load_{op} {vr(vt, n)}, v{voff}, s[{rWS}:{rWS+3}], s{soff} offen sc1", tag)
    def poll_cmp(vt, n):
        if n == 2: a(f"v_xor_b32 v{vt}, s{sTAG}, v{vt}\nv_xor_b32 v{vt+1}, s{sTAG}, v{vt+1}\nv_or_b32 v{vt}, v{vt}, v{vt+1}\nv_cmp_ne_u32 vcc, 0, v{vt}")
        else: a(f"v_cmp_ne_u32 vcc, s{sTAG}, v{vt}")
    def spin(voff, soff, vt, n=1, first_wait=None):
        L = newlab("spin")
        a(f"s_mov_b32 s12, {cfg.spin_max}")
        if first_wait is not None:
            first_wait(); a(f"s_branch {L}_chk")
        else:
            a(f"s_branch {L}_ld")
        a.label(L)
        a(f"s_sleep {cfg.psleep}")
        a.label(L + "_ld")
        keep = list(a.vm); poll_issue(voff, soff, vt, n); a.vm = keep
        a("s_waitcnt vmcnt(0)")
        a.label(L + "_chk")
        poll_cmp(vt, n)
        a(f"s_sub_u32 s12, s12, 1\ns_cselect_b64 vcc, 0, vcc\ns_cmp_eq_u64 vcc, 0\ns_cbranch_scc0 {L}")
    def unpack(dlo, dhi, src):
        a(f"v_lshlrev_b32 v{dlo}, 16, v{src}\nv_and_b32 v{dhi}, s{sMASK}, v{src}")
    def seq(*fs):
        def g():
            for f in fs: f()
        return g
    def wait_tag(tag): return lambda: a.vm_wait(tag)
    def mk_tag(): a(f"s_waitcnt lgkmcnt(0)\ns_mul_i32 s{sTAG}, s{sTAG}, 0x9E3779B1\ns_add_u32 s{sTAG}, s{sTAG}, 0x7F4A7C15")
    vCT = 0
    def lds_spin(off, val, vt, quad=False):
        L = newlab("ls")
        a(f"s_mov_b32 s12, {cfg.spin_max*16}")
        if cfg.lsleep: a(f"s_branch {L}_rd")
        a.label(L)
        if cfg.lsleep:
            a(f"s_sleep {cfg.lsleep}")
            a.label(L + "_rd")
        if quad:
            a(f"""ds_read_b128 v[{vt}:{vt+3}], v{vCT} offset:{off-CTRL}
                s_waitcnt lgkmcnt(0)
                v_min_u32 v{vt}, v{vt}, v{vt+1}
                v_min3_u32 v{vt}, v{vt}, v{vt+2}, v{vt+3}
                s_nop 0""")
        else:
            a(f"ds_read_b32 v{vt}, v{vCT} offset:{off-CTRL}\ns_waitcnt lgkmcnt(0)")
        a(f"""v_readfirstlane_b32 s11, v{vt}
            s_sub_u32 s12, s12, 1
            s_cselect_b32 s11, -1, s11
            s_cmp_lt_u32 s11, {val}
            s_cbranch_scc1 {L}""")
    def lds_set(off, val, vt):
        a(f"v_mov_b32 v{vt}, {val}\ns_mov_b64 exec, 1\nds_write_b32 v{vCT}, v{vt} offset:{off-CTRL}\ns_mov_b64 exec, -1")
    def lds_inc(off, vt):
        a(f"v_mov_b32 v{vt}, 1\ns_mov_b64 exec, 1\nds_add_u32 v{vCT}, v{vt} offset:{off-CTRL}\ns_mov_b64 exec, -1")
    def gflag(soff, vt):
        a(f"v_mov_b32 v{vt}, s{sTAG}\nv_mov_b32 v{vt+1}, 0\ns_mov_b64 exec, 1")
        a.vmem(f"buffer_store_dword v{vt}, v{vt+1}, s[{rWS}:{rWS+3}], s{soff} offen sc1", "flag")
        a("s_mov_b64 exec, -1")

    a("s_cmp_ge_u32 s2, 256\ns_cbranch_scc1 L_end")
    stamp(0); rstamp(60)
    a("s_load_dwordx16 s[16:31], s[0:1], 0\ns_load_dwordx8 s[32:39], s[0:1], 64\ns_load_dwordx4 s[40:43], s[0:1], 96")
    a(f"v_lshrrev_b32 v2, 6, v0\nv_and_b32 v1, 63, v0\ns_mov_b32 s{sMASK}, 0xffff0000\ns_mov_b32 s100, 0")
    a("s_getpc_b64 s[14:15]")
    a.label("L_pc")
    a("v_lshlrev_b32 v4, 7, v0\nv_min_u32 v4, L_code_end-L_pc-4, v4")
    a(f"v_readfirstlane_b32 s{sWAVE}, v2")
    a("v_cmp_gt_u32 vcc, (L_code_end-L_pc+127)/128, v0\ns_and_saveexec_b64 s[12:13], vcc\ns_cbranch_execz L_nopf")
    a("global_load_dword v135, v4, s[14:15]")
    a.label("L_nopf")
    a(f"s_mov_b64 exec, -1\nv_mov_b32 v{vCT}, {CTRL}")
    a(f"""s_and_b32 s{sX}, s2, 7
        s_lshr_b32 s{sJ}, s2, 3
        s_and_b32 s11, s{sX}, 1
        s_lshr_b32 s12, s{sX}, 1
        s_and_b32 s13, s{sJ}, 7
        s_lshl3_add_u32 s{sRB128}, s11, s13
        s_lshr_b32 s13, s{sJ}, 3
        s_lshl2_add_u32 s{sFB}, s12, s13
        s_and_b32 s13, s{sJ}, 3
        s_lshl2_add_u32 s{sCB}, s11, s13
        s_lshr_b32 s13, s{sJ}, 2
        s_lshl3_add_u32 s{sRB64}, s12, s13""")
    if cfg.g1map == 1:
        a(f"s_and_b32 s{sRB128}, s{sJ}, 15\ns_lshr_b32 s13, s{sJ}, 4\ns_lshl1_add_u32 s{sFB}, s{sX}, s13")
    if cfg.g1map == 2:
        a(f"s_and_b32 s11, s{sX}, 3\ns_and_b32 s13, s{sJ}, 3\ns_lshl2_add_u32 s{sRB128}, s11, s13\ns_lshr_b32 s11, s{sX}, 2\ns_lshr_b32 s13, s{sJ}, 2\ns_lshl3_add_u32 s{sFB}, s11, s13")
    if cfg.map48:
        a(f"s_and_b32 s{sCB}, s{sJ}, 7\ns_lshr_b32 s13, s{sJ}, 3\ns_lshl2_add_u32 s{sRB64}, s{sX}, s13")
    a(f"""s_cmp_lt_u32 s{sWAVE}, 4
        s_cbranch_scc1 L_comp""")

    sA=68; sLW=69; sLX=70; sOW=71; sOX=72; sOX2=73
    vW0,vW1,vW2,vXe,vXo = 4,5,6,7,2
    vLA=14
    vGx=136; vGw=137; vGx2=138; vGa=140
    a(f"s_sub_u32 s{sA}, s{sWAVE}, 4")
    a("s_mov_b32 s11, 43691\ns_movk_i32 s12, 3072")
    for i, v in enumerate((vW0,vW1,vW2)):
        a(f"""v_add_u32 v8, {64*i}, v1
            v_mul_u32_u24 v9, s11, v8
            v_lshrrev_b32 v9, 19, v9
            v_mul_u32_u24 v10, 12, v9
            v_sub_u32 v8, v8, v10
            v_lshrrev_b32 v10, 2, v9
            v_and_b32 v10, 2, v10
            v_xor_b32 v8, v8, v10
            v_lshlrev_b32 v8, 4, v8
            v_mad_u32_u24 v{v}, v9, s12, v8""")
        if i: a(f"v_subrev_u32 v{v}, {1024*i}, v{v}")
    a(f"""v_lshrrev_b32 v8, 3, v1
        v_mul_u32_u24 v8, 1280, v8
        v_lshrrev_b32 v9, 4, v1
        v_xor_b32 v9, v9, v1
        v_and_b32 v9, 7, v9
        v_lshl_add_u32 v{vXe}, v9, 4, v8
        v_xor_b32 v9, 4, v9
        v_lshl_add_u32 v{vXo}, v9, 4, v8
        v_add_u32 v{vXo}, {10240-1024}, v{vXo}
        s_and_b32 s11, s{sA}, 1
        s_lshr_b32 s12, s{sA}, 1
        s_mul_i32 s{sLW}, s12, 6144
        s_mul_i32 s13, s11, 3072
        s_add_u32 s{sLW}, s{sLW}, s13
        s_lshl_b32 s{sLX}, s{sA}, 12
        s_add_u32 s{sLX}, s{sLX}, {XB}
        s_mul_i32 s{sOW}, s{sFB}, 192
        s_mul_i32 s13, s11, 49152
        s_add_u32 s{sOW}, s{sOW}, s13
        s_lshl2_add_u32 s13, s{sRB128}, s{sA}
        s_mul_i32 s{sOX}, s13, 40960
        s_add_u32 s{sOX2}, s{sOX}, {20480-2048}""")
    sKR=96; sK0=97; sK1=98; sKW=99
    if cfg.krot:
        if cfg.krot == 1:   a(f"s_lshr_b32 s{sKR}, s{sX}, 1\ns_mul_i32 s{sKR}, s{sKR}, 5\ns_lshr_b32 s{sKR}, s{sKR}, 1")
        elif cfg.krot == 2: a(f"s_mul_i32 s{sKR}, s{sFB}, 5\ns_lshr_b32 s{sKR}, s{sKR}, 3")
        elif cfg.krot == 3: a(f"s_mul_i32 s{sKR}, s{sX}, 5\ns_lshr_b32 s{sKR}, s{sKR}, 2")
        a(f"""s_mul_i32 s11, s{sKR}, {2*98304}
            s_add_u32 s{sOW}, s{sOW}, s11
            s_lshl_b32 s11, s{sKR}, 7
            s_add_u32 s{sOX}, s{sOX}, s11
            s_add_u32 s{sOX2}, s{sOX2}, s11
            s_mov_b32 s{sK0}, s{sKR}
            s_mov_b32 s{sK1}, s{sKR}
            s_lshl_b32 s{sKW}, s{sKR}, 1""")
    a("s_waitcnt lgkmcnt(0)")
    stamp(8)
    if cfg.wsoff: a(f"s_add_u32 s{pWS}, s{pWS}, {cfg.wsoff}\ns_addc_u32 s{pWS+1}, s{pWS+1}, 0")
    a(f"s_load_dword s{sTAG}, s[{pWS}:{pWS+1}], {EPOCH}")
    a(f"s_cmp_lt_u32 s{sA}, 2\ns_cselect_b64 s[{rW}:{rW+1}], s[{pWG}:{pWG+1}], s[{pWU}:{pWU+1}]\ns_mov_b32 s{rW+2}, 1966080\ns_mov_b32 s{rW+3}, 0x20000")
    srd(rX, pQ, 2621440)
    def x_half(u, half, tag):
        a(f"s_add_u32 m0, s{sLX}, {(u % NX)*XSL}\ns_nop 0")
        so = sOX if half == 0 else sOX2
        a.vmem(f"buffer_load_dwordx4 v{vXe}, s[{rX}:{rX+3}], s{so} offen offset:{2048*half} lds", tag)
        a.vmem(f"buffer_load_dwordx4 v{vXo}, s[{rX}:{rX+3}], s{so} offen offset:{2048*half+1024} lds", tag)
        a(f"s_add_u32 s{so}, s{so}, 128")
        if cfg.krot:
            c = sK0 if half == 0 else sK1
            a(f"s_add_u32 s{c}, s{c}, 1\ns_cmp_eq_u32 s{c}, 10\ns_cselect_b32 s11, 1280, 0\ns_sub_u32 s{so}, s{so}, s11")
    def dma_stage(t):
        tag = f"dma{t}"
        if t == 0: x_half(0, 0, tag)
        if t % 2 == 0: x_half(t//2, 1, tag)
        a(f"s_add_u32 m0, s{sLW}, {(t % R)*WSL}\ns_nop 0")
        for i, v in enumerate((vW0,vW1,vW2)):
            a.vmem(f"buffer_load_dwordx4 v{v}, s[{rW}:{rW+3}], s{sOW} offen offset:{1024*i} lds", tag)
        a(f"s_add_u32 s{sOW}, s{sOW}, 98304")
        if cfg.krot:
            a(f"s_add_u32 s{sKW}, s{sKW}, 1\ns_cmp_eq_u32 s{sKW}, 20\ns_cselect_b32 s11, {20*98304}, 0\ns_sub_u32 s{sOW}, s{sOW}, s11")
        if t % 2 == 1 and t + 1 < NST: x_half((t+1)//2, 0, tag + "x")
    a.vm_reset()
    dma_stage(0); dma_stage(1)
    srd(rWS, pWS, WS_SIZE)
    a(f"""s_lshl_b32 s11, s{sCB}, 5
        s_add_u32 s11, s11, s{sRB64}
        s_lshl_b32 s11, s11, 4
        s_lshl2_add_u32 s11, s{sA}, s11
        s_add_u32 s78, s11, {S1FLAG}""")
    vm_common = list(a.vm)
    a(f"s_cmp_eq_u32 s{sWAVE}, 7\ns_cbranch_scc1 L_svc")

    def gate_setup():
        a(f"""s_lshr_b32 s11, s{sFB}, 1
            s_lshl_b32 s11, s11, 4
            v_and_b32 v10, 15, v1
            v_add_u32 v10, s11, v10
            v_lshrrev_b32 v11, 4, v1
            v_lshlrev_b32 v{vGw}, 4, v11
            v_add_u32 v{vGw}, {GW}, v{vGw}
            v_bfe_u32 v12, v10, 1, 3
            v_xor_b32 v11, v11, v12
            v_lshlrev_b32 v11, 4, v11
            v_lshl_add_u32 v11, v10, 7, v11
            v_add_u32 v{vGx}, {XB}, v11
            v_xor_b32 v{vGx2}, 64, v{vGx}""")
        for i in range(4): a(f"v_mov_b32 v{vGa+i}, 0")
        if cfg.krot: a(f"s_lshl_b32 s93, s{sKR}, 7")
    def gate_rd(u):
        if cfg.krot:
            a(f"""v_add_u32 v139, s93, v{vGw}
                s_add_u32 s93, s93, 128
                s_cmp_eq_u32 s93, 1280
                s_cselect_b32 s93, 0, s93""")
        gw, o = (139, 0) if cfg.krot else (vGw, 128*u)
        a(f"""ds_read_b128 v[144:147], v{vGx} offset:{(u % NX)*XSL}
            ds_read_b128 v[148:151], v{gw} offset:{o}
            ds_read_b128 v[152:155], v{vGx2} offset:{(u % NX)*XSL}
            ds_read_b128 v[156:159], v{gw} offset:{o+64}""")
    def gate_dot():
        a(f"""s_waitcnt lgkmcnt(0)
            v_mfma_f32_16x16x32_bf16 v[{vGa}:{vGa+3}], v[148:151], v[144:147], v[{vGa}:{vGa+3}]
            v_mfma_f32_16x16x32_bf16 v[{vGa}:{vGa+3}], v[156:159], v[152:155], v[{vGa}:{vGa+3}]""")
    def gate_fin():
        g = vGa
        a(f"""s_lshl_b32 s11, s{sRB128}, 9
            s_lshr_b32 s12, s{sFB}, 1
            s_lshl_b32 s12, s12, 6
            s_add_u32 s11, s11, s12
            s_add_u32 s11, s11, {GATE}
            s_and_b32 s12, s{sFB}, 1
            s_lshl_b32 s12, s12, 3
            s_lshl_b32 s12, 0xff, s12
            s_nop 0
            v_cvt_pk_bf16_f32 v{g}, v{g}, v{g}
            v_lshlrev_b32 v{g}, 16, v{g}
            v_mul_f32 v{g}, 0xbfb8aa3b, v{g}
            v_exp_f32 v{g}, v{g}
            s_nop 0
            v_add_f32 v{g}, 1.0, v{g}
            v_rcp_f32 v{g}, v{g}
            s_nop 0
            v_cvt_pk_bf16_f32 v{g}, v{g}, v{g}
            v_lshlrev_b32 v{g}, 16, v{g}
            v_sub_f32 v{g+1}, 1.0, v{g}
            v_cvt_pk_bf16_f32 v{g}, v{g}, v{g+1}
            v_lshlrev_b32 v{g+1}, 2, v1
            s_mov_b32 exec_lo, s12
            s_mov_b32 exec_hi, 0""")
        a.vmem(f"buffer_store_dword v{g}, v{g+1}, s[{rWS}:{rWS+3}], s11 offen sc1", "gate")
        a("s_mov_b64 exec, -1")
    def aux_loop(side, gate=False):
        if 'pre' in side: side['pre']()
        a(f"s_setprio {cfg.aprio}")
        mk_tag()
        stamp(9)
        a.vm_wait("dma0"); stamp(10)
        for t in range(2, cfg.pre_n): dma_stage(t)
        if cfg.pairbar: a.vm_wait("dma1")
        a("s_waitcnt lgkmcnt(0)\ns_barrier")
        if 'post' in side: side['post']()
        nxt = cfg.pre_n
        while nxt < (6 if cfg.pairbar else cfg.bla): dma_stage(nxt); nxt += 1
        if gate: gate_rd(0)
        for t in range(NST):
            if cfg.pairbar:
                if t % 2 == 1:
                    if t + 2 < NST: a.vm_wait(f"dma{t+2}")
                    stamp(16+t)
                    a("s_barrier")
                    stamp(40+t)
                    while nxt <= t + 5 and nxt < NST: dma_stage(nxt); nxt += 1
            else:
                if t + 1 < NST: a.vm_wait(f"dma{t+1}")
                stamp(16+t)
                if not cfg.x_nobar: a("s_barrier")
                stamp(40+t)
                while nxt <= t + cfg.bla and nxt < NST: dma_stage(nxt); nxt += 1
            if gate and t % 2 == 0: gate_dot()
            if gate and t % 2 == 1 and t + 1 < NST: gate_rd((t+1)//2)
            if t == cfg.tflag:
                if "st1" in a.vm: a.vm_wait("st1")
                gflag(78, 160)
            if gate and t == NST-2: gate_fin()
            if t in side: side[t]()

    vK=136; vV=48; vSw=126
    vKh,vK0,vK1,vSh,vT1 = 40,42,43,44,45
    def s1_store():
        a(f"""s_lshl_b32 s11, s{sA}, 6
            v_add_u32 v69, s11, v1
            v_lshrrev_b32 v67, 3, v69
            v_and_b32 v68, 7, v69
            v_lshlrev_b32 v68, 4, v68
            v_mul_u32_u24 v64, 144, v67
            s_mov_b32 s12, {T1}
            v_add3_u32 v64, v64, v68, s12
            v_lshl_add_u32 v65, v67, 12, v68
            s_mul_i32 s11, s{sCB}, {80*4096}
            s_lshl_b32 s12, s{sRB64}, 7
            s_sub_u32 s11, s11, s12
            s_add_u32 s11, s11, {KVR+1984*2}
            v_cmp_gt_u32 vcc, 64, v69
            v_mov_b32 v67, {OOB}""")
        for i in range(4):
            a(f"ds_read_b128 v[{72+4*i}:{72+4*i+3}], v64 offset:{i*24*144}")
        a("v_cndmask_b32 v66, v67, v65, vcc")
        for i in range(4):
            a(f"s_waitcnt lgkmcnt({3-i})")
            a.vmem(f"buffer_store_dwordx4 v[{72+4*i}:{72+4*i+3}], v{65 if i<3 else 66}, s[{rWS}:{rWS+3}], s11 offen sc1", "st1")
            if i < 3: a(f"s_add_u32 s11, s11, {24*4096}")
    sD=74; sCR=75; sDv=76; sVal=77
    vA=[16,17,18,19]; vB=20; vE=21
    cAcc=32; cS=[64,128]
    def conv_ids():
        a(f"""s_cmp_lt_u32 s{sRB64}, 16
            s_cselect_b32 s11, 3, 2
            s_cselect_b32 s12, 0, 16
            s_cmp_lt_u32 s{sA}, s11
            s_cselect_b32 s{sVal}, 1, 0
            s_cselect_b32 s14, s{sA}, 0
            s_mul_i32 s13, s{sRB64}, s11
            s_add_u32 s13, s13, s12
            s_mul_i32 s{sD}, s{sCB}, 80
            s_add_u32 s{sD}, s{sD}, s13
            s_add_u32 s{sD}, s{sD}, s14
            s_mul_i32 s{sCR}, s{sA}, {CSZ}
            s_add_u32 s{sCR}, s{sCR}, {CB}
            s_lshl_b32 s11, s{sD}, 1
            s_and_b32 s11, s11, 0xfffffffc
            s_load_dword s{sDv}, s[{pSD}:{pSD+1}], s11""")
        srd(rSK, pSK, 2621440)
        a(f"""v_and_b32 v10, 15, v1
            v_lshrrev_b32 v11, 4, v1
            v_and_b32 v12, 1, v1
            v_lshlrev_b32 v13, 1, v10
            v_lshl_add_u32 v13, v11, 4, v13
            v_cmp_eq_u32 vcc, 1, v12
            v_mov_b32 v8, {HO+32-32}
            v_mov_b32 v9, {HE+32-30}
            v_cndmask_b32 v8, v8, v9, vcc
            v_add3_u32 v{vA[0]}, v13, v8, s{sCR}
            v_add_u32 v{vA[1]}, 1024, v{vA[0]}
            v_add_u32 v{vA[2]}, 2048, v{vA[0]}
            v_add_u32 v{vA[3]}, 3072, v{vA[0]}
            v_lshlrev_b32 v13, 5, v10
            v_lshlrev_b32 v8, 4, v11
            v_sub_u32 v8, v8, v13
            v_add_u32 v8, {XR+4064-3584}, v8
            v_add_u32 v{vB}, s{sCR}, v8
            v_lshlrev_b32 v8, 3, v11
            v_add_u32 v8, v8, v13
            v_add_u32 v22, s{sCR}, v8
            v_sub_u32 v{vE}, {XR+4088-3584}, v8
            v_add_u32 v{vE}, s{sCR}, v{vE}
            v_lshlrev_b32 v8, 4, v1
            v_add_u32 v9, 2, v8
            v_add_u32 v23, s{sCR}, v8
            s_waitcnt lgkmcnt(0)
            s_bitcmp1_b32 s{sD}, 0
            s_cselect_b32 s12, 0, 16
            s_lshl_b32 s{sDv}, s{sDv}, s12
            s_and_b32 s{sDv}, s{sDv}, 0xffff0000""")
        for i in range(32): a(f"v_mov_b32 v{cAcc+i}, 0")
    def conv_pre():
        a(f"""s_cmp_eq_u32 s{sVal}, 0
            s_cselect_b32 s12, {OOB}, 0
            v_add_u32 v8, s12, v8
            v_add_u32 v9, s12, v9
            s_lshl_b32 s79, s{sD}, 12
            s_add_u32 m0, s{sCR}, {HE+32}
            v_mov_b32 v12, 0
            v_mov_b32 v13, 0""")
        for i in range(4): a.vmem(f"buffer_load_dwordx4 v8, s[{rSK}:{rSK+3}], s79 offen offset:{1024*i} lds", "he")
        a(f"s_add_u32 m0, s{sCR}, {HO+32}\ns_nop 0")
        for i in range(2): a.vmem(f"buffer_load_dwordx4 v9, s[{rSK}:{rSK+3}], s79 offen offset:{1024*i} lds", "he")
    def conv_pre2():
        for i in range(2, 4): a.vmem(f"buffer_load_dwordx4 v9, s[{rSK}:{rSK+3}], s79 offen offset:{1024*i} lds", "he")
        a(f"""v_lshlrev_b32 v10, 3, v1
            v_add_u32 v10, s{sCR}, v10
            ds_write_b64 v10, v[12:13] offset:{XR+4096}
            v_and_b32 v11, 3, v1
            v_lshlrev_b32 v11, 3, v11
            v_add_u32 v11, s{sCR}, v11
            ds_write_b64 v11, v[12:13] offset:{HE}
            ds_write_b64 v11, v[12:13] offset:{HO}
            ds_read_b32 v152, v{vCT} offset:{F_S1-CTRL}
            s_add_u32 s79, s79, {KVR}""")
    def xr_issue():
        a(f"s_add_u32 m0, s{sCR}, {XR}\ns_nop 0")
        for i in range(4): a(f"buffer_load_dwordx4 v8, s[{rWS}:{rWS+3}], s79 offen offset:{1024*i} sc1 lds")
    def conv_xr():
        a("s_waitcnt lgkmcnt(0)\nv_readfirstlane_b32 s94, v152\ns_cmp_eq_u32 s94, 0\ns_cbranch_scc1 L_xr_skip")
        xr_issue()
        a.label("L_xr_skip")
    aux_loop({'pre': conv_ids, 'post': s1_store, cfg.tconv: conv_pre, cfg.tconv+1: conv_pre2, NST-2: conv_xr})
    a("s_barrier")
    stamp(1)
    a(f"s_setprio {cfg.vprio}")
    a(f"s_cmp_eq_u32 s{sVal}, 0\ns_cbranch_scc1 L_end")
    a("s_cmp_lg_u32 s94, 0\ns_cbranch_scc1 L_xr_done")
    lds_spin(F_S1, 1, 148)
    xr_issue()
    a.label("L_xr_done")
    a("s_waitcnt vmcnt(4)")
    a(f"""v_mov_b32 v10, s{sCR}
        ds_read_b32 v11, v10 offset:{HE+32}
        s_waitcnt lgkmcnt(0)
        v_lshlrev_b32 v11, 16, v11
        ds_write_b32 v10, v11 offset:{HO+28}
        s_waitcnt vmcnt(0)""")
    def conv_reads(st, cp):
        base = cS[st]; out = []
        def rdA(C):
            o = (C&1)*128 + cp*16
            r = base+4*C
            return [f"ds_read2_b32 v[{r}:{r+1}], v{vA[C>>1]} offset0:{o} offset1:{o+1}",
                    f"ds_read2_b32 v[{r+2}:{r+3}], v{vA[C>>1]} offset0:{o+2} offset1:{o+3}"]
        def rdB(U):
            r = base+32+4*U
            return [f"ds_read_b128 v[{r}:{r+3}], v{vB} offset:{(7-U)*512+cp*64}"]
        out += rdA(0)
        for U in range(8): out += rdB(U)
        for C in range(1,8): out += rdA(C)
        return out
    def conv_mfmas(st):
        base = cS[st]; out = []
        for C in range(8):
            for J in range(C, 8):
                U = J-C
                out.append(f"v_mfma_f32_16x16x32_bf16 v[{cAcc+4*J}:{cAcc+4*J+3}], v[{base+4*C}:{base+4*C+3}], v[{base+32+4*U}:{base+32+4*U+3}], v[{cAcc+4*J}:{cAcc+4*J+3}]")
        return out
    if cfg.x_noconv: a("s_sleep 100\ns_sleep 100\ns_branch L_skipconv")
    if cfg.cpause >= 0: lds_spin(C_E, 4, 148)
    stamp(2)
    for l in conv_reads(0, 0): a(l)
    a("s_mov_b32 s11, 4")
    a.label("L_conv")
    for st in range(2):
        a("s_waitcnt lgkmcnt(0)")
        if st == 1:
            for v in vA + [vB]: a(f"v_add_u32 v{v}, 128, v{v}")
        rd = conv_reads(1-st, 1 if st == 0 else 0)
        mf = conv_mfmas(st)
        k = 0
        for i, m in enumerate(mf):
            a(m)
            for _ in range(cfg.cper):
                if k < len(rd): a(rd[k]); k += 1
    a("s_sub_u32 s11, s11, 1\ns_cmp_lg_u32 s11, 0\ns_cbranch_scc1 L_conv")
    a.label("L_skipconv")
    stamp(3)
    a("s_setprio 3\ns_waitcnt lgkmcnt(0)")
    for J in range(8): a(f"ds_read_b64 v[{64+2*J}:{65+2*J}], v{vE} offset:{(7-J)*512}")
    a(f"s_lshl_b32 s13, s{sD}, 12\ns_add_u32 s13, s13, {YTW}\ns_lshl_b32 s14, s{sD}, 2\ns_add_u32 s14, s14, {YFLAG}")
    for J in range(8):
        A = cAcc+4*J; K = 64+2*J; T = 96
        a(f"""s_waitcnt lgkmcnt({min(15, 7-J+J)})
            v_and_b32 v{T}, s{sMASK}, v{K+1}
            v_lshlrev_b32 v{T+1}, 16, v{K+1}
            v_and_b32 v{T+2}, s{sMASK}, v{K}
            v_lshlrev_b32 v{T+3}, 16, v{K}
            v_fmac_f32 v{A}, s{sDv}, v{T}
            v_fmac_f32 v{A+1}, s{sDv}, v{T+1}
            v_fmac_f32 v{A+2}, s{sDv}, v{T+2}
            v_fmac_f32 v{A+3}, s{sDv}, v{T+3}
            v_cvt_pk_bf16_f32 v{K}, v{A}, v{A+1}
            v_cvt_pk_bf16_f32 v{K+1}, v{A+2}, v{A+3}
            ds_write_b64 v22, v[{K}:{K+1}] offset:{512*J}""")
    a("s_waitcnt lgkmcnt(0)")
    for i in range(4): a(f"ds_read_b128 v[{96+4*i}:{99+4*i}], v23 offset:{1024*i}")
    stamp(5)
    for i in range(4):
        a(f"s_waitcnt lgkmcnt({3-i})\nbuffer_store_dwordx4 v[{96+4*i}:{99+4*i}], v8, s[{rWS}:{rWS+3}], s13 offen offset:{1024*i} sc1")
    stamp(6)
    a("s_waitcnt vmcnt(0)")
    gflag(14, 12)
    stamp(4)
    stamp_store(10)
    a("s_endpgm")

    a.label("L_svc")
    a.vm = list(vm_common)
    pF=100
    def svc_init():
        srd(rM2, pGW, 1280)
        a(f"""v_mov_b32 v8, 0
            v_mov_b32 v9, 0
            v_mov_b32 v10, 0
            v_mov_b32 v11, 0
            s_mov_b64 exec, 1
            ds_write_b128 v{vCT}, v[8:11] offset:{F_S1-CTRL}
            ds_write_b128 v{vCT}, v[8:11]
            ds_write_b128 v{vCT}, v[8:11] offset:16
            s_mov_b64 exec, -1
            v_lshlrev_b32 v8, 4, v1
            s_mov_b32 m0, {GW}
            s_nop 0""")
        a.vmem(f"buffer_load_dwordx4 v8, s[{rM2}:{rM2+3}], 0 offen lds", "gw")
        a("s_mov_b64 exec, 0xffff")
        a.vmem(f"buffer_load_dwordx4 v8, s[{rM2}:{rM2+3}], 0 offen offset:1024 lds", "gw")
        a("s_mov_b64 exec, -1")
    def pt_addr():
        srd(rM1, pWD, 1966080)
        a(f"""s_mul_i32 s13, s{sRB64}, 3
        s_mul_i32 s91, s{sCB}, 160
        s_movk_i32 s12, 1280""")
        for n in range(8):
            a(f"""v_add_u32 v126, {64*n}, v1
            v_mul_u32_u24 v127, 6554, v126
            v_lshrrev_b32 v127, 16, v127
            v_mul_u32_u24 v128, 10, v127
            v_sub_u32 v128, v126, v128
            v_lshlrev_b32 v128, 4, v128
            v_lshrrev_b32 v129, 4, v127
            v_add_u32 v129, s13, v129
            v_and_b32 v130, 1, v129
            v_lshrrev_b32 v129, 1, v129
            v_lshlrev_b32 v129, 2, v129
            v_add_u32 v129, v129, v130
            v_bfe_u32 v130, v127, 3, 1
            v_lshl_add_u32 v129, v130, 1, v129
            v_and_b32 v127, 7, v127
            v_lshl_add_u32 v127, v129, 3, v127
            v_mad_u32_u24 v{104+n}, v127, s12, v128""")
    def pt_issue():
        a(f"s_mov_b32 m0, {PT}\ns_nop 0")
        for n in range(8):
            if n == 7: a("s_mov_b32 exec_hi, 0")
            a.vmem(f"buffer_load_dwordx4 v{104+n}, s[{rM1}:{rM1+3}], s91 offen lds", "pt")
            if n < 7: a(f"s_add_u32 m0, m0, 1024\ns_nop 0")
        a("s_mov_b32 exec_hi, -1")
    def pretile_addr():
        a(f"""v_bfe_u32 v115, v1, 4, 1
            v_bfe_u32 v116, v1, 2, 2
            v_lshl_add_u32 v116, v115, 2, v116
            v_mul_u32_u24 v116, 160, v116
            v_lshrrev_b32 v117, 5, v1
            v_lshl_add_u32 v116, v117, 5, v116
            v_and_b32 v112, 3, v1
            v_lshl_add_u32 v116, v112, 3, v116
            v_add_u32 v116, {PT}, v116
            v_and_b32 v112, 15, v1
            v_lshl_add_u32 v112, v115, 4, v112
            v_lshlrev_b32 v112, 4, v112
            v_lshl_add_u32 v112, v117, 10, v112
            v_cmp_gt_u32 vcc, 32, v1
            v_mov_b32 v113, {OOB}""")
        a("s_nop 0\nv_cndmask_b32 v113, v113, v112, vcc")
    def svc_pretile():
        if cfg.ptlate: a.vm_wait('pt')
        for m in range(3):
            for u in range(3):
                r = 64 + 4*(3*m+u)
                a(f"ds_read_b64_tr_b16 v[{r}:{r+1}], v116 offset:{m*2560+u*64}\nds_read_b64_tr_b16 v[{r+2}:{r+3}], v116 offset:{m*2560+u*64+1280}")
        a(f"s_mul_i32 s13, s{sRB64}, 3\ns_mul_i32 s14, s{sCB}, 48")
        a("s_waitcnt lgkmcnt(0)")
        for m in range(3):
            a(f"""s_add_u32 s11, s13, {m}
                s_lshr_b32 s12, s11, 1
                s_add_u32 s12, s12, s14
                s_mul_i32 s12, s12, 5120
                s_and_b32 s11, s11, 1
                s_lshl_b32 s11, s11, 9
                s_add_u32 s11, s11, s12
                s_add_u32 s11, s11, {WDT}
                s_add_u32 s12, s11, 4096""")
            for u in range(3):
                r = 64 + 4*(3*m+u)
                if cfg.x_nopt and (m, u) != (0, 0): continue
                if u < 2: a.vmem(f"buffer_store_dwordx4 v[{r}:{r+3}], v112, s[{rWS}:{rWS+3}], s11 offen offset:{2048*u} sc1", "stw" if cfg.ptlate else "st1")
                else:     a.vmem(f"buffer_store_dwordx4 v[{r}:{r+3}], v113, s[{rWS}:{rWS+3}], s12 offen sc1", "stw" if cfg.ptlate else "st1")
    def svc_poll():
        a(f"v_lshlrev_b32 v8, 3, v1\ns_lshl_b32 s79, s{sCB}, 9\ns_add_u32 s79, s79, {S1FLAG}")
        poll_issue(8, 79, 10, 2, "poll")
    def svc_check():
        a.vm_wait("poll")
        poll_cmp(10, 2)
        a("s_mov_b32 s94, 0\ns_cmp_eq_u64 vcc, 0\ns_cbranch_scc0 L_chk_no\ns_mov_b32 s94, 1")
        lds_set(F_S1, 1, 12)
        a.label("L_chk_no")
    def svc_pre(): svc_init(); a.vm.append("dma0"); a.vm.pop();
    def svc_pre2():
        svc_init()
        a.vm[-1] = "dma0"
        gate_setup()
        pretile_addr()
        if cfg.ptlate: pt_addr()
    def svc_check2():
        spin(8, 79, 10, 2, first_wait=wait_tag("poll"))
        lds_set(F_S1, 1, 12)
        a(f"""v_lshlrev_b32 v16, 4, v1
            v_add_u32 v17, 4096, v16
            s_mul_i32 s95, s{sCB}, {48*5120}
            s_add_u32 s95, s95, {WDT+5*5120}""")
    def wd_group(i):
        def f():
            for w in range(4):
                a(f"s_add_u32 s13, s95, {(12*w+i)*5120}\ns_mov_b32 m0, {GRP[i]+w*5120}\ns_nop 0")
                for nt in range(4):
                    a.vmem(f"buffer_load_dwordx4 v16, s[{rWS}:{rWS+3}], s13 offen offset:{1024*nt} sc1 lds", f"g{i}")
                a(f"s_mov_b32 m0, {GRP[i]+w*5120+4096}\ns_nop 0")
                a.vmem(f"buffer_load_dwordx4 v17, s[{rWS}:{rWS+3}], s13 offen sc1 lds", f"g{i}")
        return f
    assert not cfg.hrot and not cfg.ycoop
    def svc_wflag():
        a(f"s_lshl_b32 s11, s{sCB}, 5\ns_add_u32 s11, s11, s{sRB64}\ns_lshl_b32 s11, s11, 2\ns_add_u32 s92, s11, {WFLAG}")
        a.vm_wait("stw"); gflag(92, 160)
    sd = {'pre': svc_pre2, cfg.tpoll: svc_poll, cfg.tchk: svc_check2}
    def add(t, f): sd[t] = seq(sd[t], f) if t in sd else f
    if cfg.ptlate:
        assert cfg.gearly == 0
        add(cfg.tpt, pt_issue); add(cfg.tpt2, svc_pretile); add(cfg.tpt3, svc_wflag)
        def wpoll():
            a(f"v_and_b32 v8, 31, v1\nv_lshlrev_b32 v8, 2, v8\ns_lshl_b32 s79, s{sCB}, 7\ns_add_u32 s79, s79, {WFLAG}")
            poll_issue(8, 79, 10, 1, "wpoll")
        add(cfg.tpt4, wpoll)
    else: sd['post'] = svc_pretile
    early = [(16, 0), (18, 1), (19, 2)][:cfg.gearly]
    for t_, g_ in early: sd[t_] = wd_group(g_)
    aux_loop(sd, gate=True)
    a("s_barrier")
    if cfg.ptlate:
        spin(8, 79, 10, 1, first_wait=wait_tag("wpoll"))
    lds_set(F_WT, 1, 12)
    a(f"v_mov_b32 v12, 16\ns_mov_b64 exec, 1\nds_add_u32 v{vCT}, v12 offset:{C_H-CTRL}\ns_mov_b64 exec, -1")
    for i in range(cfg.gearly, 5):
        wd_group(i)()
        if i == cfg.gearly: a.vm_wait("gate"); lds_inc(C_G, 12)
    a("s_waitcnt vmcnt(0)")
    lds_set(F_WD, 1, 12)
    a("s_waitcnt lgkmcnt(0)")
    stamp(1)
    stamp_store(10)
    a("s_endpgm")

    a.label("L_comp")
    vWl = [24,25,26]; vWn = [[27,28,29],[30,31,32]]; vXb = [33,34]; vXn = [35,36]
    FS=[48,88]; ACC=160
    vL=2; vL4=4; vH=[5,6,7,8]; vHS=9; vG3=[10,11,12]; vP=13; vQ=14; vO=15; vY=16; vRR=[17,18,19]; vYo=20; vF=21; vGo=22; vGt=23; vF8=175
    sHi=[72,73,74,75]; sWi=[76,77,78,79]
    sHS=88; sHF=89; sHo=90; sWo=91; sPV=92; sRC=93; sGA=94; sW25=95; sHP=96; sYP=97; sYo=98; sNL=99; sHS2=87
    def comp_setup():
        a(f"""v_lshrrev_b32 v158, 4, v1
        v_bfe_u32 v159, v1, 2, 2
        v_lshl_add_u32 v159, v158, 3, v159
        v_mul_u32_u24 v159, 192, v159
        v_and_b32 v46, 3, v1
        v_lshl_add_u32 v159, v46, 3, v159
        v_and_b32 v47, 1, v158
        s_and_b32 s13, s{sWAVE}, 1
        s_add_u32 s11, s13, 2
        v_xor_b32 v46, s11, v47
        v_lshl_add_u32 v{vWl[0]}, v46, 5, v159
        s_lshl_b32 s11, s13, 2
        v_xor_b32 v46, s11, v47
        v_lshl_add_u32 v{vWl[1]}, v46, 5, v159
        s_add_u32 s11, s11, 1
        v_xor_b32 v46, s11, v47
        v_lshl_add_u32 v{vWl[2]}, v46, 5, v159
        v_and_b32 v46, 31, v1
        v_lshlrev_b32 v{vF}, 2, v46
        v_and_b32 v46, 15, v1
        v_bfe_u32 v47, v1, 1, 3
        v_xor_b32 v47, v47, v158
        v_lshlrev_b32 v47, 4, v47
        v_lshl_add_u32 v47, v46, 7, v47
        s_lshr_b32 s11, s{sWAVE}, 1
        s_lshl_b32 s11, s11, 13
        s_add_u32 s11, s11, {XB}
        v_add_u32 v{vXb[0]}, s11, v47
        v_xor_b32 v{vXb[1]}, 64, v{vXb[0]}
        v_lshlrev_b32 v{vGo}, 2, v46
        s_lshl_b32 s11, s{sWAVE}, 10
        s_add_u32 s11, s11, {EX}
        v_lshlrev_b32 v{vHS}, 3, v1
        v_add_u32 v{vHS}, s11, v{vHS}
        v_lshlrev_b32 v{vL}, 4, v1
        v_add_u32 v{vL4}, 4096, v{vL}
        s_mul_i32 s{sPV}, s{sWAVE}, 5120
        s_mul_i32 s{sW25}, s{sWAVE}, 2560
        v_add_u32 v{vP}, s{sPV}, v{vL}
        v_mul_u32_u24 v47, 160, v46
        v_lshrrev_b32 v134, 4, v1
        v_lshl_add_u32 v47, v134, 3, v47
        v_add_u32 v{vO}, s{sPV}, v47
        s_add_u32 s11, s{sW25}, {QT}
        v_add_u32 v{vQ}, s11, v47
        v_lshlrev_b32 v47, 3, v1
        v_add_u32 v{vY}, s{sPV}, v47
        v_lshrrev_b32 v47, {3 if cfg.ycoop else 1}, v1
        v_and_b32 v134, {7 if cfg.ycoop else 1}, v1
        v_lshlrev_b32 v134, 4, v134
        v_lshl_add_u32 v{vYo}, v47, 12, v134
        s_lshr_b32 s11, s{sWAVE}, 1
        s_lshl1_add_u32 s11, s{sRB128}, s11
        s_mul_i32 s12, s11, {48*4096}
        s_mul_i32 s13, s{sFB}, {3*4096}
        s_add_u32 s12, s12, s13
        s_and_b32 s13, s{sWAVE}, 1
        s_add_u32 s12, s12, {HT}
        s_lshl_b32 s14, s13, 13
        s_add_u32 s{sHS}, s12, s14
        s_lshl_b32 s14, s13, 11
        s_add_u32 s{sHS2}, s12, s14
        s_add_u32 s{sHS2}, s{sHS2}, 4096
        s_lshl_b32 s11, s11, 7
        s_lshl3_add_u32 s11, s{sFB}, s11
        s_lshl2_add_u32 s11, s13, s11
        s_add_u32 s{sHF}, s11, {HFLAG}
        s_mov_b32 s{sNL}, 0xbfb8aa3b
        s_mul_i32 s11, s{sWAVE}, 12
        s_mul_i32 s12, s{sCB}, 48
        s_add_u32 s12, s12, s11
        s_mul_i32 s{sWo}, s12, 5120
        s_add_u32 s{sWo}, s{sWo}, {WDT}
        s_mul_i32 s12, s{sRB64}, 48
        s_add_u32 s12, s12, s11
        s_lshl_b32 s{sHo}, s12, 12
        s_add_u32 s{sHo}, s{sHo}, {HT}
        s_lshl2_add_u32 s11, s{sRB64}, s{sWAVE}
        s_mul_i32 s{sRC}, s11, {16*1280}
        s_mul_i32 s12, s{sCB}, 160
        s_add_u32 s{sRC}, s{sRC}, s12
        s_lshl_b32 s{sGA}, s11, 6
        s_add_u32 s{sGA}, s{sGA}, {GATE}
        s_lshl_b32 s{sYo}, s11, 5
        s_mul_i32 s12, s{sCB}, {80*4096}
        s_add_u32 s{sYo}, s{sYo}, s12
        s_add_u32 s{sYo}, s{sYo}, {YTW}
        s_lshl_b32 s{sHP}, s{sRB64}, 7
        s_add_u32 s{sHP}, s{sHP}, {HFLAG}
        s_mul_i32 s{sYP}, s{sCB}, 320
        s_add_u32 s{sYP}, s{sYP}, {YFLAG}""")
        if cfg.ycoop:
            a(f"""s_mul_i32 s11, s{sWAVE}, 80
            s_add_u32 s{sYP}, s{sYP}, s11
            s_lshl_b32 s{sYo}, s{sRB64}, 7
            s_mul_i32 s12, s{sCB}, {80*4096}
            s_add_u32 s{sYo}, s{sYo}, s12
            s_mul_i32 s12, s{sWAVE}, {20*4096}
            s_add_u32 s{sYo}, s{sYo}, s12
            s_add_u32 s{sYo}, s{sYo}, {YTW}""")
        for m in range(4):
            a(f"s_add_u32 s11, s{sRot}, {m}\ns_and_b32 s11, s11, 3\ns_mul_i32 s12, s11, {3*4096}\ns_add_u32 s{sHi[m]}, s{sHo}, s12\ns_mul_i32 s12, s11, {3*5120}\ns_add_u32 s{sWi[m]}, s{sWo}, s12")
            a(f"s_add_u32 s11, s{sWAVE}, {m}\ns_and_b32 s11, s11, 3\ns_lshl_b32 s12, s11, 10\nv_add_u32 v{vH[m]}, s12, v{vL}")
            if m: a(f"s_sub_u32 s11, s{sWAVE}, {m}\ns_and_b32 s11, s11, 3\ns_mul_i32 s11, s11, 5120\ns_add_u32 s11, s11, {GRP[m]}\nv_add_u32 v{vRR[m-1]}, s11, v{vL}")
        for n in range(3):
            a(f"""v_add_u32 v158, {64*n}, v1
            v_mul_u32_u24 v159, 6554, v158
            v_lshrrev_b32 v159, 16, v159
            v_mul_u32_u24 v46, 10, v159
            v_sub_u32 v46, v158, v46
            v_lshlrev_b32 v46, 4, v46
            v_mul_u32_u24 v159, 1280, v159
            v_add_u32 v{vG3[n]}, v159, v46""")
        a(f"v_cmp_gt_u32 vcc, 32, v1\nv_mov_b32 v158, {OOB}\ns_nop 0\nv_cndmask_b32 v{vG3[2]}, v158, v{vG3[2]}, vcc")
    a("s_waitcnt lgkmcnt(0)")
    stamp(8)
    if cfg.wsoff: a(f"s_add_u32 s{pWS}, s{pWS}, {cfg.wsoff}\ns_addc_u32 s{pWS+1}, s{pWS+1}, 0")
    a(f"s_load_dword s{sTAG}, s[{pWS}:{pWS+1}], {EPOCH}")
    a(f"s_cmp_eq_u32 s{sWAVE}, 3\ns_cbranch_scc1 L_nos1")
    a.vm_reset()
    srd(rM1, pK, 2621440); srd(rM2, pV, 2621440); srd(rM3, pSH, 5120)
    a(f"""s_lshl_b32 s11, s{sWAVE}, 6
        v_add_u32 v158, s11, v1
        v_mul_u32_u24 v159, 3277, v158
        v_lshrrev_b32 v159, 16, v159
        v_mul_u32_u24 v46, 20, v159
        v_sub_u32 v46, v158, v46
        s_mul_i32 s11, s{sRB64}, 81920
        s_mul_i32 s12, s{sCB}, 160
        s_add_u32 s11, s11, s12
        v_mul_u32_u24 v{vK0}, 10240, v159
        v_lshl_add_u32 v{vK0}, v46, 3, v{vK0}
        v_add_u32 v{vK0}, s11, v{vK0}
        s_lshl_b32 s12, s12, 2
        v_lshlrev_b32 v{vSh}, 5, v46
        v_add_u32 v{vSh}, s12, v{vSh}
        v_cmp_gt_u32 vcc, 160, v158
        v_mov_b32 v47, {OOB}
        v_mul_u32_u24 v{vT1}, 576, v46
        v_cndmask_b32 v{vK0}, v47, v{vK0}, vcc
        v_subrev_u32 v{vKh}, 3840, v{vK0}
        v_add_u32 v{vK1}, 5120, v{vK0}""")
    a.vmem(f"buffer_load_dwordx4 v[{vSw}:{vSw+3}], v{vSh}, s[{rM3}:{rM3+3}], 0 offen", "sw")
    a.vmem(f"buffer_load_dwordx4 v[{vSw+4}:{vSw+7}], v{vSh}, s[{rM3}:{rM3+3}], 0 offen offset:16", "sw")
    for r in range(11):
        base, off = (vKh, r*1280) if r < 3 else ((vK0, (r-3)*1280) if r < 7 else (vK1, (r-7)*1280))
        if cfg.x_nos1 and r > 0: a.vm.append(f"k{r}"); continue
        a.vmem(f"buffer_load_dwordx2 v[{vK+2*r}:{vK+2*r+1}], v{base}, s[{rM1}:{rM1+3}], 0 offen offset:{off}", f"k{r}")
    for r in range(8):
        base, off = (vK0, r*1280) if r < 4 else (vK1, (r-4)*1280)
        if cfg.x_nos1: a.vm.append(f"v{r}"); continue
        a.vmem(f"buffer_load_dwordx2 v[{vV+2*r}:{vV+2*r+1}], v{base}, s[{rM2}:{rM2+3}], 0 offen offset:{off}", f"v{r}")
    a(f"""v_lshlrev_b32 v159, 4, v159
        v_sub_u32 v{vT1}, v{vT1}, v159
        v_add_u32 v{vT1}, {T1+112}, v{vT1}
        v_mov_b32 v47, {DUMMY}
        v_cndmask_b32 v{vT1}, v47, v{vT1}, vcc""")
    comp_setup()
    for i in range(96): a(f"v_mov_b32 v{ACC+i}, 0")
    stamp(15)
    a.vm_wait("sw")
    for p in range(2):
        for cc in range(2):
            c = 2*p+cc
            unpack(64+8*p+0+cc, 64+8*p+2+cc, vSw+2*c); unpack(64+8*p+4+cc, 64+8*p+6+cc, vSw+2*c+1)
    for r in range(11):
        a.vm_wait(f"k{r}")
        for p in range(2): unpack(80+22*p+2*r, 80+22*p+2*r+1, vK+2*r+p)
        if r >= 3:
            rr = r - 3
            for p in range(2):
                A = 80+22*p+2*rr; W = 64+8*p
                a(f"v_pk_mul_f32 v[{A}:{A+1}], v[{A}:{A+1}], v[{W+6}:{W+7}]")
                for jj in (2,1,0):
                    kr = 80+22*p+2*(rr+3-jj)
                    a(f"v_pk_fma_f32 v[{A}:{A+1}], v[{kr}:{kr+1}], v[{W+2*jj}:{W+2*jj+1}], v[{A}:{A+1}]")
    stamp(11)
    for r in range(8):
        a.vm_wait(f"v{r}")
        for p in range(2):
            A = 80+22*p+2*r
            unpack(124, 125, vV+2*r+p)
            a(f"v_pk_mul_f32 v[{A}:{A+1}], v[{A}:{A+1}], v[124:125]")
    for p in range(2):
        for cc in range(2):
            O = 136 + 8*p + 4*cc
            for m in range(4):
                a(f"v_cvt_pk_bf16_f32 v{O+m}, v{80+22*p+2*(7-2*m)+cc}, v{80+22*p+2*(6-2*m)+cc}")
            a(f"ds_write_b128 v{vT1}, v[{O}:{O+3}] offset:{(2*p+cc)*144}")
    a("s_waitcnt lgkmcnt(0)\ns_branch L_s1done")
    a.label("L_nos1")
    if not cfg.ptlate: pt_addr(); pt_issue()
    comp_setup()
    for i in range(96): a(f"v_mov_b32 v{ACC+i}, 0")
    stamp(15); stamp(11)
    a.label("L_s1done")
    stamp(14)
    srd(rWS, pWS, WS_SIZE)
    srd(rX, pQ, 2621440)
    def g1_reads(st, w, x):
        b = FS[st]; out = [f"ds_read_b128 v[{b+24}:{b+27}], v{x}"]
        for l in range(3):
            for mat in range(2):
                r = b + (l*2+mat)*4
                out.append(f"ds_read_b64_tr_b16 v[{r}:{r+1}], v{w[l]} offset:{mat*6144}")
                out.append(f"ds_read_b64_tr_b16 v[{r+2}:{r+3}], v{w[l]} offset:{mat*6144+768}")
        for t_ in range(1, 4): out.append(f"ds_read_b128 v[{b+24+4*t_}:{b+27+4*t_}], v{x} offset:{2048*t_}")
        return out
    accr = lambda l, mat, t_: ACC + ((l*2+mat)*4 + t_)*4
    def g1_mfmas(st):
        b = FS[st]; out = []
        idx = [(t_, l, mat) for t_ in range(4) for l in range(3) for mat in range(2)]
        if cfg.g1ord == 1: idx = [(t_, l, mat) for l in range(3) for mat in range(2) for t_ in range(4)]
        if cfg.g1ord == 2: idx = [((t_ if (l*2+mat) % 2 == 0 else 3-t_), l, mat) for l in range(3) for mat in range(2) for t_ in range(4)]
        for (t_, l, mat) in idx:
                    r = b + (l*2+mat)*4; c = accr(l, mat, t_)
                    out.append(f"v_mfma_f32_16x16x32_bf16 v[{c}:{c+3}], v[{r}:{r+3}], v[{b+24+4*t_}:{b+27+4*t_}], v[{c}:{c+3}]")
        return out
    a("s_waitcnt vmcnt(0)")
    mk_tag()
    if cfg.cprio: a(f"s_setprio {cfg.cprio}")
    a("s_barrier")
    stamp(1); rstamp(59)
    for l in g1_reads(0, vWl, vXb[0]): a(l)
    sSB=68; sIT=69; sXS=70
    a(f"""s_mov_b32 s{sSB}, {WSL}
        s_mov_b32 s{sXS}, 0
        s_mov_b32 s{sIT}, {NST//2}
        s_mov_b32 m0, 16
        v_add_u32 v{vWn[0][0]}, s{sSB}, v{vWl[0]}
        v_add_u32 v{vWn[0][1]}, s{sSB}, v{vWl[1]}
        v_add_u32 v{vWn[0][2]}, s{sSB}, v{vWl[2]}
        v_mov_b32 v{vXn[0]}, v{vXb[1]}
        s_waitcnt lgkmcnt(0)""")
    a.label("L_g1")
    def g1_addr(st):
        out = [f"s_add_u32 s{sSB}, s{sSB}, {WSL}", f"s_cmp_eq_u32 s{sSB}, {R*WSL}", f"s_cselect_b32 s{sSB}, 0, s{sSB}"]
        out += [f"v_add_u32 v{vWn[st][l]}, s{sSB}, v{vWl[l]}" for l in range(3)]
        if st == 1: out += [f"s_add_u32 s{sXS}, s{sXS}, {XSL}", f"s_and_b32 s{sXS}, s{sXS}, {NX*XSL-1}"]
        out += [f"v_add_u32 v{vXn[st]}, s{sXS}, v{vXb[1-st]}"]
        return out
    need = []
    for t_ in range(4):
        for l in range(3):
            for mat in range(2): need.append(max((l*2+mat)*2 + 2, 0 if t_ == 0 else 12 + t_))
    for st in range(2):
        ops = g1_reads(1-st, vWn[st], vXn[st]); mf = g1_mfmas(st)
        ad = g1_addr(1-st)
        k = 0; covered = -1
        for i_, m in enumerate(mf):
            nd = need[i_]
            if cfg.g1one: nd = 15
            if nd > covered:
                n = (15 - nd) + k
                if n <= 15: a(f"s_waitcnt lgkmcnt({n})"); covered = nd
                else: a("s_waitcnt lgkmcnt(15)"); covered = 15 + k - 15
            a(m)
            if i_ == 0:
                stamp(0, 70)
                if cfg.stamps == 2: a("s_add_u32 m0, m0, 1")
                a("s_barrier")
            else:
                for _ in range(cfg.g1per):
                    if k < len(ops): a(ops[k]); k += 1
                if k == len(ops) and i_ >= 17 and ad: a(ad.pop(0));
                if k == len(ops) and i_ >= 17 and ad and i_ < 20: a(ad.pop(0))
        assert k == len(ops) and not ad, (k, ad)
    a(f"s_sub_u32 s{sIT}, s{sIT}, 1\ns_cmp_lg_u32 s{sIT}, 0\ns_cbranch_scc1 L_g1")
    stamp(2); rstamp(61)
    a(f"s_setprio {cfg.eprio}\ns_waitcnt lgkmcnt(0)\ns_barrier")
    WS_=[48+20*i for i in range(5)]; AC2=176
    HSL=[[24,28,32,36],[148,152,156,160],[40,44,164,168]]
    vT=172; vP2=175
    a.vm_reset()
    def ld_wd(step):
        b = wslot[step]
        a(f"s_add_u32 s13, s{sWi[step // 3]}, {(step % 3)*5120}")
        for nt in range(5):
            a.vmem(f"buffer_load_dwordx4 v[{b+4*nt}:{b+4*nt+3}], v{vL if nt<4 else vL4}, s[{rWS}:{rWS+3}], s13 offen offset:{1024*(nt&3)} sc1", f"w{step}")
    def ld_h(step):
        hs = HSL[step % 3]
        a(f"s_add_u32 s13, s{sHi[step // 3]}, {(step % 3)*4096}")
        for m in range(4):
            a.vmem(f"buffer_load_dwordx4 v[{hs[m]}:{hs[m]+3}], v{vH[m]}, s[{rWS}:{rWS+3}], s13 offen sc1", f"h{step}")
    wslot = {s_: WS_[s_] for s_ in range(5)}
    wslot.update({5: WS_[0], 6: WS_[1], 7: WS_[0], 8: WS_[1], 9: WS_[0], 10: WS_[2], 11: WS_[3]})
    def hflag(c):
        a.vm_wait(f"hst{c}")
        gflag(sHF, 148)
        a(f"s_add_u32 s{sHF}, s{sHF}, 0x1000")
    def sig_mul(l, ts):
        es = [(accr(l, 0, t_) + r, accr(l, 1, t_) + r) for t_ in ts for r in range(4)]
        for g, u in es: a(f"v_mul_f32 v{g}, s{sNL}, v{g}")
        for g, u in es: a(f"v_exp_f32 v{g}, v{g}")
        for g, u in es: a(f"v_add_f32 v{g}, 1.0, v{g}")
        for g, u in es: a(f"v_rcp_f32 v{g}, v{g}")
        for g, u in es: a(f"v_mul_f32 v{g}, v{g}, v{u}")
    def pack(dst, l, t_):
        g = accr(l, 0, t_)
        a(f"v_cvt_pk_bf16_f32 v{dst}, v{g}, v{g+1}\nv_cvt_pk_bf16_f32 v{dst+1}, v{g+2}, v{g+3}")
    PX = CTRL + 16
    def xsend():
        a(f"s_bitcmp1_b32 s{sWAVE}, 0\ns_cbranch_scc1 L_xa1")
        pack(40, 0, 0); pack(44, 0, 1); pack(148, 0, 2); pack(150, 0, 3)
        a("s_branch L_xa2")
        a.label("L_xa1")
        pack(42, 0, 2); pack(46, 0, 3); pack(148, 0, 0); pack(150, 0, 1)
        a.label("L_xa2")
        a(f"""ds_write_b64 v{vHS}, v[148:149]
        ds_write_b64 v{vHS}, v[150:151] offset:512
        s_lshr_b32 s11, s{sWAVE}, 1
        s_lshl_b32 s11, s11, 2
        v_add_u32 v152, s11, v{vCT}
        v_mov_b32 v153, 1
        v_xor_b32 v{vHS}, 0x400, v{vHS}
        s_mov_b64 exec, 1
        ds_add_u32 v152, v153 offset:{PX-CTRL}
        s_mov_b64 exec, -1""")
        stamp(12)
    if not cfg.epipe: sig_mul(0, (0, 1)); sig_mul(0, (2, 3)); xsend()
    if cfg.wepi: lds_spin(F_WT, 1, 154)
    for i in range(cfg.wepi): ld_wd(i)
    def xrecv(sfx=""):
        a(f"""ds_read_b32 v153, v152 offset:{PX-CTRL}
            s_bitcmp1_b32 s{sWAVE}, 0
            s_cbranch_scc1 L_xb1{sfx}
            ds_read_b64 v[42:43], v{vHS}
            ds_read_b64 v[46:47], v{vHS} offset:512
            s_branch L_xb2{sfx}""")
        a.label("L_xb1" + sfx)
        a(f"ds_read_b64 v[40:41], v{vHS}\nds_read_b64 v[44:45], v{vHS} offset:512")
        a.label("L_xb2" + sfx)
    def xcheck():
        a(f"s_mov_b32 s12, {cfg.spin_max*16}\ns_branch L_xchk")
        a.label("L_xs")
        xrecv("r")
        a.label("L_xchk")
        a(f"""s_waitcnt lgkmcnt(0)
            v_readfirstlane_b32 s11, v153
            s_sub_u32 s12, s12, 1
            s_cselect_b32 s11, 2, s11
            s_cmp_lt_u32 s11, 2
            s_cbranch_scc1 L_xs""")
    def st_p(t_):
        if cfg.x_nost and t_ < 3: return
        a.vmem(f"buffer_store_dwordx4 v[{24+4*t_}:{27+4*t_}], v{vL}, s[{rWS}:{rWS+3}], s{sHS} offen offset:{1024*t_} sc1", "hst0")
    def st_s():
        xcheck()
        for t_ in range(2):
            a.vmem(f"buffer_store_dwordx4 v[{40+4*t_}:{43+4*t_}], v{vL}, s[{rWS}:{rWS+3}], s{sHS2} offen offset:{1024*t_} sc1", "hst0")
    def sig_mul2(t_):
        es = [(accr(l, 0, t_) + r, accr(l, 1, t_) + r) for l in (1, 2) for r in range(4)]
        for g, u in es: a(f"v_mul_f32 v{g}, s{sNL}, v{g}")
        for g, u in es: a(f"v_exp_f32 v{g}, v{g}")
        for g, u in es: a(f"v_add_f32 v{g}, 1.0, v{g}")
        for g, u in es: a(f"v_rcp_f32 v{g}, v{g}")
        for g, u in es: a(f"v_mul_f32 v{g}, v{g}, v{u}")
        pack(24 + 4*t_, 1, t_); pack(26 + 4*t_, 2, t_)
    if cfg.epipe:
        els = [(accr(0, 0, t_) + r, accr(0, 1, t_) + r) for t_ in range(4) for r in range(4)]
        els += [(accr(l, 0, t_) + r, accr(l, 1, t_) + r) for t_ in range(4) for l in (1, 2) for r in range(4)]
        N = len(els)
        def post(i):
            if i == 15: xsend()
            if i >= 16 and (i - 16) % 8 == 7:
                t_ = (i - 16) // 8
                pack(24 + 4*t_, 1, t_); pack(26 + 4*t_, 2, t_)
                st_p(t_)
                if t_ == 0: xrecv()
                if t_ == 1: stamp(13)
                if t_ == cfg.xst: st_s()
        for i in range(2): a(f"v_mul_f32 v{els[i][0]}, s{sNL}, v{els[i][0]}")
        for i in range(N + 5):
            if i < N: a(f"v_exp_f32 v{els[i][0]}, v{els[i][0]}")
            if i + 2 < N: a(f"v_mul_f32 v{els[i+2][0]}, s{sNL}, v{els[i+2][0]}")
            if 0 <= i - 2 < N: a(f"v_add_f32 v{els[i-2][0]}, 1.0, v{els[i-2][0]}")
            if 0 <= i - 3 < N: a(f"v_rcp_f32 v{els[i-3][0]}, v{els[i-3][0]}")
            if 0 <= i - 5 < N:
                a(f"v_mul_f32 v{els[i-5][0]}, v{els[i-5][0]}, v{els[i-5][1]}")
                post(i - 5)
    elif cfg.prog:
        for t_ in range(4):
            sig_mul2(t_)
            if t_ == cfg.cpause: lds_inc(C_E, 154)
            st_p(t_)
            if t_ == 1: xrecv(); stamp(13)
            if t_ == 2: st_s()
    else:
        for t_ in range(4):
            sig_mul2(t_)
            if t_ == 1: stamp(13)
        xrecv()
        for t_ in range(4): st_p(t_)
        st_s()
    stamp(3)
    for i in range(80): a(f"v_mov_b32 v{AC2+i}, 0")
    lds_spin(C_G, 1, 148)
    hflag(0)
    stamp(7); rstamp(62)
    lds_inc(C_H, 150)
    lds_spin(C_H, 20, 150)
    for i in range(cfg.wepi, cfg.wmid): ld_wd(i)
    poll_issue(vF, sHP, vT, 1, "pA")
    for i in range(cfg.wmid, 5): ld_wd(i)
    for n in range(3):
        a(f"s_add_u32 m0, s{sW25}, {QT+1024*n}\n" + ("s_mov_b32 exec_hi, 0" if n == 2 else "s_nop 0"))
        a.vmem(f"buffer_load_dwordx4 v{vG3[n]}, s[{rX}:{rX+3}], s{sRC} offen lds", "q")
    a("s_mov_b32 exec_hi, -1")
    spin(vF, sHP, vT, first_wait=wait_tag("pA"))
    stamp(4); rstamp(58)
    for s_ in range(3): ld_h(s_)
    a.vmem(f"buffer_load_dword v{vGt}, v{vGo}, s[{rWS}:{rWS+3}], s{sGA} offen sc1", "gate")
    a(f"v_min_u32 v{vF}, {9 if cfg.ycoop else 39}, v1\nv_lshlrev_b32 v{vF}, 3, v{vF}")
    def rd_wd(s_):
        b = wslot[s_]
        g = GRP[s_-5]
        return [f"ds_read_b128 v[{b+4*nt}:{b+4*nt+3}], v{vP if g < 65536 else vP2} offset:{(g & 0xffff)+nt*1024}" for nt in range(5)]
    Yr = WS_[4]; Qr = WS_[4] + 10; GA = WS_[0]; TT = WS_[1]
    ga_code = []
    for i in range(10):
        t = TT + 4*(i & 3)
        ga_code += [f"v_lshlrev_b32 v{t}, 16, v{Yr+i}", f"v_and_b32 v{t+1}, s{sMASK}, v{Yr+i}",
                    f"v_lshlrev_b32 v{t+2}, 16, v{Qr+i}", f"v_and_b32 v{t+3}, s{sMASK}, v{Qr+i}",
                    f"v_mul_f32 v{t}, v{t}, v{t+2}", f"v_mul_f32 v{t+1}, v{t+1}, v{t+3}",
                    f"v_mul_f32 v{GA+2*i}, v{t}, v{vT}", f"v_mul_f32 v{GA+2*i+1}, v{t+1}, v{vT}"]
    for step in range(12):
        hs = HSL[step % 3]; wb = wslot[step]
        a.vm_wait(f"h{step}")
        if step >= 10 or cfg.wmid <= step <= 4: a.vm_wait(f"w{step}")
        if 5 <= step <= 9: a("s_waitcnt lgkmcnt(0)")
        stamp(40+step)
        if step == 4: lds_spin(F_WD, 1, 175); a(f"v_add_u32 v{vP2}, 0x10000, v{vP}")
        fill = rd_wd(step+1) if 5 <= step+1 <= 9 else []
        per = 1
        if step == 10:
            a.vm_wait("y")
            if cfg.ycoop: lds_inc(C_Y, 174); lds_spin(C_Y, 4, 174)
            for nt in range(5): a(f"ds_read_b64_tr_b16 v[{Yr+2*nt}:{Yr+2*nt+1}], v{vY} offset:{GRP[0]+nt*512}")
            for nt in range(5): a(f"ds_read_b64 v[{Qr+2*nt}:{Qr+2*nt+1}], v{vQ} offset:{nt*32}")
            fill = [f"v_lshlrev_b32 v{vT}, 16, v{vGt}", f"v_and_b32 v{vT+1}, s{sMASK}, v{vGt}"] + ["s_nop 0"]*6 + ["s_waitcnt lgkmcnt(0)"] + ga_code[:31]
            per = 2
        if step == 11: fill = ga_code[31:]; per = 3
        i = 0
        for m in range(4):
            for nt in range(5):
                c = AC2 + (m*5+nt)*4
                a(f"v_mfma_f32_16x16x32_bf16 v[{c}:{c+3}], v[{wb+4*nt}:{wb+4*nt+3}], v[{hs[m]}:{hs[m]+3}], v[{c}:{c+3}]")
                for _ in range(per):
                    if i < len(fill): a(fill[i]); i += 1
        assert i == len(fill)
        if step + 3 < 12: ld_h(step+3)
        if step in (2, 3): ld_wd(step+8)
        if step == cfg.ystep - 2: poll_issue(vF, sYP, vT, 2, "ypoll")
        if step == cfg.ystep:
            spin(vF, sYP, vT, 2, first_wait=wait_tag("ypoll"))
            stamp(9)
            for n in range(3):
                a(f"s_add_u32 m0, s{sPV}, {GRP[0]+1024*n}\n" + ("s_mov_b32 exec_hi, 0" if n == 2 else "s_nop 0"))
                a.vmem(f"buffer_load_dwordx4 v{vYo}, s[{rWS}:{rWS+3}], s{sYo} offen sc1 lds", "y")
                if n < 2: a(f"s_add_u32 s{sYo}, s{sYo}, {(8 if cfg.ycoop else 32)*4096}")
            a("s_mov_b32 exec_hi, -1")
    stamp(5); rstamp(57)
    srd(rM1, pOUT, 2621440)
    a("s_nop 4")
    for m in range(1, 4):
        for nt in range(5):
            c = AC2 + (m*5+nt)*4
            a(f"ds_write_b128 v{vP if GRP[m] < 65536 else vP2}, v[{c}:{c+3}] offset:{(GRP[m] & 0xffff)+nt*1024}")
    a("s_waitcnt lgkmcnt(0)\ns_barrier")
    P=88
    for nt in range(5):
        for sl in range(3):
            r = P + (nt*3+sl)*4
            a(f"ds_read_b128 v[{r}:{r+3}], v{vRR[sl]} offset:{nt*1024}")
    a(f"v_mov_b32 v{vT}, v{vT+1}")
    for nt in range(5):
        c = AC2 + nt*4
        a(f"s_waitcnt lgkmcnt({12-3*nt+nt})")
        for sl in range(3):
            r = P + (nt*3+sl)*4
            a(f"v_pk_add_f32 v[{c}:{c+1}], v[{c}:{c+1}], v[{r}:{r+1}]\nv_pk_add_f32 v[{c+2}:{c+3}], v[{c+2}:{c+3}], v[{r+2}:{r+3}]")
        for h in range(2):
            x = c + 2*h
            a(f"v_pk_fma_f32 v[{x}:{x+1}], v[{x}:{x+1}], v[{vT}:{vT+1}], v[{GA+4*nt+2*h}:{GA+4*nt+2*h+1}]")
        a(f"v_cvt_pk_bf16_f32 v{c}, v{c}, v{c+1}\nv_cvt_pk_bf16_f32 v{c+1}, v{c+2}, v{c+3}")
        a(f"ds_write_b64 v{vO}, v[{c}:{c+1}] offset:{GRP[4]+nt*32}")
    a("s_waitcnt lgkmcnt(0)")
    for n in range(3): a(f"ds_read_b128 v[{P+4*n}:{P+4*n+3}], v{vP} offset:{GRP[4]+1024*n}")
    for n in range(3):
        a(f"s_waitcnt lgkmcnt({2-n})\nbuffer_store_dwordx4 v[{P+4*n}:{P+4*n+3}], v{vG3[n]}, s[{rM1}:{rM1+3}], s{sRC} offen {cfg.ost}")
    stamp(6); rstamp(63)
    stamp_store(26)
    if cfg.dbgout:
        srd(rM3, pDBG, 256)
        a(f"""s_cmp_lg_u32 s{sWAVE}, 0
            s_cbranch_scc1 L_nodbg
            v_subrev_u32 v26, 57, v1
            v_lshlrev_b32 v26, 2, v26
            v_not_b32 v27, v3
            s_mov_b32 exec_lo, 0
            s_mov_b32 exec_hi, 0xfe000000
            buffer_atomic_umax v3, v26, s[{rM3}:{rM3+3}], 0 offen sc1
            buffer_atomic_umax v27, v26, s[{rM3}:{rM3+3}], 0 offen offset:32 sc1
            s_mov_b64 exec, -1
            s_waitcnt vmcnt(0)""")
        a.label("L_nodbg")
    a(f"s_or_b32 s11, s2, s{sWAVE}\ns_cmp_lg_u32 s11, 0\ns_cbranch_scc1 L_end")
    a(f"s_mov_b32 s12, {cfg.spin_max}\ns_movk_i32 s11, {S1FLAG}")
    a.label("L_ep")
    for i in range(4): a(f"buffer_load_dwordx4 v[{24+4*i}:{27+4*i}], v{vL}, s[{rWS}:{rWS+3}], s11 offen offset:{1024*i} sc1")
    a("s_waitcnt vmcnt(0)")
    for i in range(16): a(f"v_xor_b32 v{24+i}, s{sTAG}, v{24+i}")
    for i in range(1, 16): a(f"v_or_b32 v24, v24, v{24+i}")
    a(f"""v_cmp_ne_u32 vcc, 0, v24
        s_sub_u32 s12, s12, 1
        s_cselect_b64 vcc, 0, vcc
        s_cmp_eq_u64 vcc, 0
        s_cbranch_scc0 L_ep
        v_mov_b32 v18, s{sTAG}
        v_mov_b32 v19, 0
        s_mov_b64 exec, 1
        buffer_store_dword v18, v19, s[{rWS}:{rWS+3}], 0 offen sc1""")
    a.label("L_end")
    a("s_endpgm")
    a.label("L_code_end")
    body = a.text()
    ref = open(f"cdna_kernels/{NAME}.s.ref").read()
    head = [l for l in ref.split("\n") if l.startswith(";") and "@launch" not in l]
    out = "\n".join(head) + f"\n; @launch grid=(256,1,1) block=(512,1,1) lds={LDS_BYTES}\n"
    out += f""".amdgcn_target "amdgcn-amd-amdhsa--gfx950"
.text
.globl {NAME}_kernel
.p2align 8
.type {NAME}_kernel,@function
{NAME}_kernel:
{body}.section .rodata,"a"
.p2align 6
.amdhsa_kernel {NAME}_kernel
  .amdhsa_next_free_vgpr 256
  .amdhsa_next_free_sgpr 102
  .amdhsa_accum_offset 256
  .amdhsa_group_segment_fixed_size 0
  .amdhsa_kernarg_size 112
  .amdhsa_user_sgpr_count 2
  .amdhsa_user_sgpr_kernarg_segment_ptr 1
  .amdhsa_system_sgpr_workgroup_id_x 1
.end_amdhsa_kernel
"""
    return out, body

if __name__ == "__main__":
    outp = sys.argv[1] if len(sys.argv) > 1 else "k.s"
    for kv in sys.argv[2:]:
        k, v = kv.split("="); setattr(cfg, k, eval(v))
    out, body = gen(cfg)
    errs = check_hazards(body)
    for e in errs: print("HAZARD", e)
    open(outp, "w").write(out)
    print("wrote", outp, len(out), "bytes;", len(errs), "hazards")
```

```python
HDR = """.amdgcn_target "amdgcn-amd-amdhsa--gfx950"
.text
"""
def kern(name, body, vgpr=128, sgpr=64, accum=128):
    return f""".globl {name}
.p2align 8
.type {name},@function
{name}:
{body}
s_endpgm
.section .rodata,"a"
.p2align 6
.amdhsa_kernel {name}
  .amdhsa_next_free_vgpr {vgpr}
  .amdhsa_next_free_sgpr {sgpr}
  .amdhsa_accum_offset {accum}
  .amdhsa_group_segment_fixed_size 0
  .amdhsa_kernarg_size 32
  .amdhsa_user_sgpr_count 2
  .amdhsa_user_sgpr_kernarg_segment_ptr 1
  .amdhsa_system_sgpr_workgroup_id_x 1
.end_amdhsa_kernel
.text
"""
REGION = 2621440
def pro():
    return f"""
    s_load_dwordx2 s[4:5], s[0:1], 0
    s_load_dwordx2 s[6:7], s[0:1], 8
    s_waitcnt lgkmcnt(0)
    s_mov_b32 s8, s4
    s_mov_b32 s9, s5
    s_mov_b32 s10, {REGION}
    s_mov_b32 s11, 0x00020000
    v_lshrrev_b32 v1, 6, v0   ; wave
    v_and_b32 v2, 63, v0      ; lane
    s_nop 0
    v_readfirstlane_b32 s20, v1
"""
def bw(name, pattern, U, depth, dma, NIT):
    b = pro()
    if pattern == 'lin':
        b += "    v_lshlrev_b32 v3, 4, v2\n"
        step = 1024
        b += "    s_lshl_b32 s21, s20, 10\n"
        adv = 4096
        offs = [0]*U
    elif pattern == 'frag':
        b += "    v_and_b32 v4, 15, v2\n    v_mul_u32_u24 v3, 1280, v4\n    v_lshrrev_b32 v4, 4, v2\n    v_lshlrev_b32 v4, 4, v4\n    v_add_u32 v3, v3, v4\n"
        b += "    s_mul_i32 s21, s20, 20480\n"
    elif pattern == 'row128':
        b += "    v_lshrrev_b32 v4, 3, v2\n    v_mul_u32_u24 v3, 1280, v4\n    v_and_b32 v4, 7, v2\n    v_lshlrev_b32 v4, 4, v4\n    v_add_u32 v3, v3, v4\n"
        b += "    s_mul_i32 s21, s20, 10240\n"
    elif pattern == 'row64':
        b += "    v_lshrrev_b32 v4, 2, v2\n    v_mul_u32_u24 v3, 1280, v4\n    v_and_b32 v4, 3, v2\n    v_lshlrev_b32 v4, 4, v4\n    v_add_u32 v3, v3, v4\n"
        b += "    s_mul_i32 s21, s20, 20480\n"
    b += f"    s_lshr_b32 s22, s2, 3\n    s_mul_i32 s22, s22, 81920\n    s_add_u32 s21, s21, s22\n"
    b += f"    s_lshl_b32 s24, s20, 14\n"
    b += f"    s_mov_b32 s23, {NIT}\n"
    b += "L_%s:\n" % name
    for u in range(U):
        if pattern == 'lin':
            so = u*4096
        elif pattern in ('frag','row64'):
            so = u*64
        elif pattern == 'row128':
            so = (u%10)*128 + (u//10)*40960
        b += f"    s_add_u32 s25, s21, {so}\n"
        if dma:
            b += f"    s_add_u32 m0, s24, {(u%16)*1024}\n    s_nop 0\n"
            b += f"    buffer_load_dwordx4 v3, s[8:11], s25 offen lds\n"
        else:
            r = 16 + 4*(u % 20)
            b += f"    buffer_load_dwordx4 v[{r}:{r+3}], v3, s[8:11], s25 offen\n"
        b += f"    s_waitcnt vmcnt({depth})\n"
    b += f"    s_add_u32 s21, s21, 81920\n"
    b += f"    s_cmp_ge_u32 s21, {REGION}\n    s_cselect_b32 s26, {REGION}, 0\n    s_sub_u32 s21, s21, s26\n"
    b += f"    s_sub_u32 s23, s23, 1\n    s_cmp_lg_u32 s23, 0\n    s_cbranch_scc1 L_{name}\n"
    b += "    s_waitcnt vmcnt(0)\n"
    return kern(name, b)

names = []
out = ""
for pattern in ['lin','frag','row128','row64']:
    for dma in [0,1]:
        for depth in [4, 8, 16]:
            n = f"bw_{pattern}_{dma}_{depth}_kernel"
            names.append(n)
            out += bw(n, pattern, 20, depth, dma, 200)
hdr = "".join(f"; @launch kernel={n} grid=(256,1,1) block=(256,1,1) lds=65536\n" for n in names)
open("mb1.s","w").write(hdr + HDR + out)
print(names)
```

```python
from mb1_gen import kern, HDR
REGION = 2621440
names=[]; out=""
def pro():
    return f"""
    s_load_dwordx2 s[4:5], s[0:1], 0
    s_load_dwordx2 s[6:7], s[0:1], 8
    s_load_dwordx2 s[16:17], s[0:1], 24
    s_waitcnt lgkmcnt(0)
    s_mov_b32 s8, s4
    s_mov_b32 s9, s5
    s_mov_b32 s10, {REGION}
    s_mov_b32 s11, 0x00020000
    s_mov_b32 s12, s6
    s_mov_b32 s13, s7
    s_mov_b32 s14, {1<<20}
    s_mov_b32 s15, 0x00020000
    s_mov_b32 s18, {512<<20}
    s_mov_b32 s19, 0x00020000
    v_lshrrev_b32 v1, 6, v0
    v_and_b32 v2, 63, v0
    s_nop 0
    v_readfirstlane_b32 s20, v1
"""
def fin(name):
    return f"""
    s_lshl_b32 s37, s2, 3
    s_add_u32 s37, s37, s20
    s_lshl_b32 s37, s37, 8
    v_lshlrev_b32 v21, 2, v2
    buffer_store_dword v3, v21, s[12:15], s37 offen
    s_waitcnt vmcnt(0)
"""
def st(k): return f"    s_memtime s[32:33]\n    s_waitcnt lgkmcnt(0)\n    v_writelane_b32 v3, s32, {k}\n"
def mix(name, ntouch, sleep, width):
    b = pro() + "    v_mov_b32 v3, 0\n    s_cmp_ge_u32 s20, 4\n    s_cbranch_scc1 L_t_%s\n" % name
    b += "    v_lshlrev_b32 v4, 4, v2\n    s_lshl_b32 s24, s20, 14\n"
    for p in range(2):
        b += "    s_lshl_b32 s21, s20, 10\n    s_lshr_b32 s22, s2, 3\n    s_mul_i32 s22, s22, 81920\n    s_add_u32 s21, s21, s22\n"
        b += f"    s_mov_b32 s23, {32 if p==0 else 20}\n"
        if p == 1: b += "    s_barrier\n" + st(0)
        b += f"L_{name}_{p}:\n"
        for u in range(20):
            b += f"    s_add_u32 s25, s21, {u*4096}\n    s_add_u32 m0, s24, {(u%16)*1024}\n    s_nop 0\n    buffer_load_dwordx4 v4, s[8:11], s25 offen lds\n    s_waitcnt vmcnt(8)\n"
        b += f"    s_add_u32 s21, s21, 81920\n    s_cmp_ge_u32 s21, {REGION}\n    s_cselect_b32 s26, {REGION}, 0\n    s_sub_u32 s21, s21, s26\n"
        b += f"    s_sub_u32 s23, s23, 1\n    s_cmp_lg_u32 s23, 0\n    s_cbranch_scc1 L_{name}_{p}\n    s_waitcnt vmcnt(0)\n"
    b += st(1) + fin(name) + "    s_endpgm\n"
    b += f"L_t_{name}:\n    s_barrier\n" + st(0)
    b += f"    s_cmp_lg_u32 s20, 4\n    s_cbranch_scc1 L_e_{name}\n"
    b += f"    v_lshlrev_b32 v4, 7, v2\n    s_lshl_b32 s21, s2, 20\n"
    if ntouch:
        b += f"    s_mov_b32 s23, {ntouch}\nL_tt_{name}:\n"
        b += f"    buffer_load_dword v10, v4, s[16:19], s21 offen\n    s_add_u32 s21, s21, 8192\n"
        b += f"    s_sleep {sleep}\n" if sleep else ""
        b += f"    s_sub_u32 s23, s23, 1\n    s_cmp_lg_u32 s23, 0\n    s_cbranch_scc1 L_tt_{name}\n"
    b += st(1) + "    s_waitcnt vmcnt(0)\n" + st(2)
    b += f"L_e_{name}:\n" + fin(name)
    return kern(name, b)
def cap(name, kind):
    b = pro() + "    v_mov_b32 v3, 0\n" + f"    s_cmp_lg_u32 s20, 0\n    s_cbranch_scc1 L_e_{name}\n"
    if kind == 'touch': b += f"    v_lshlrev_b32 v4, 7, v2\n"; step = 8192
    else: b += f"    v_lshlrev_b32 v4, 4, v2\n"; step = 1024
    b += "    s_lshl_b32 s21, s2, 20\n    s_mov_b32 m0, 0\n" + st(0)
    for i in range(60):
        if kind == 'touch': b += f"    buffer_load_dword v10, v4, s[16:19], s21 offen\n"
        elif kind == 'x4': b += f"    buffer_load_dwordx4 v[12:15], v4, s[16:19], s21 offen\n"
        else: b += f"    buffer_load_dwordx4 v4, s[16:19], s21 offen lds\n"
        b += f"    s_add_u32 s21, s21, {step}\n" + st(1+i)
    b += "    s_waitcnt vmcnt(0)\n" + st(62)
    b += f"L_e_{name}:\n" + fin(name)
    return kern(name, b)
for (n, nt, sl) in [("mix0",0,0),("mix20s8",20,8),("mix40s4",40,4),("mix80s2",80,2),("mix10s16",10,16)]:
    names.append(n+"_kernel"); out += mix(n+"_kernel", nt, sl, 4)
for k in ['touch','x4','dma']:
    names.append(f"cap{k}_kernel"); out += cap(f"cap{k}_kernel", k)
hdr = "".join(f"; @launch kernel={n} grid=(256,1,1) block=(512,1,1) lds=65536\n" for n in names)
open("mb6.s","w").write(hdr + HDR + out)
```

```python
from mb1_gen import kern, HDR
from mb6_gen import pro, fin, st
names=[]; out=""
def g1(name, rot, xmode, depth, mapping, parts="wx", fl=""):
    b = pro() + "    v_mov_b32 v3, 0\n" + f"    s_cmp_ge_u32 s20, 4\n    s_cbranch_scc1 L_e_{name}\n"
    b += "    s_and_b32 s40, s2, 7\n    s_lshr_b32 s41, s2, 3\n"
    if mapping == "8x4":
        b += "    s_and_b32 s42, s40, 1\n    s_lshr_b32 s43, s40, 1\n    s_and_b32 s44, s41, 7\n    s_lshl3_add_u32 s45, s42, s44\n    s_lshr_b32 s47, s41, 3\n    s_lshl2_add_u32 s46, s43, s47\n"
        nr, nf = 8, 4
    elif mapping == "4x8":
        b += "    s_and_b32 s42, s40, 3\n    s_lshr_b32 s43, s40, 2\n    s_and_b32 s44, s41, 3\n    s_lshl2_add_u32 s45, s42, s44\n    s_lshr_b32 s47, s41, 2\n    s_lshl3_add_u32 s46, s43, s47\n"
        nr, nf = 4, 8
    b += "    s_mov_b32 s50, 43691\n    s_movk_i32 s51, 3072\n"
    for i in range(3):
        b += f"    v_add_u32 v8, {64*i}, v2\n    v_mul_u32_u24 v9, s50, v8\n    v_lshrrev_b32 v9, 19, v9\n    v_mul_u32_u24 v10, 12, v9\n    v_sub_u32 v8, v8, v10\n    v_lshlrev_b32 v8, 4, v8\n    v_mad_u32_u24 v{4+i}, v9, s51, v8\n"
    if xmode == 64:
        b += "    v_lshrrev_b32 v8, 2, v2\n    v_mul_u32_u24 v8, 1280, v8\n    v_and_b32 v9, 3, v2\n    v_lshl_add_u32 v7, v9, 4, v8\n"
    else:
        b += "    v_lshrrev_b32 v8, 3, v2\n    v_mul_u32_u24 v8, 1280, v8\n    v_and_b32 v9, 7, v2\n    v_lshl_add_u32 v7, v9, 4, v8\n"
    if rot:
        b += f"    s_mul_i32 s52, s47, {40//nf}\n    s_mul_i32 s53, s44, {40//nr}\n    s_add_u32 s52, s52, s53\n    s_lshr_b32 s52, s52, 1\n    s_cmp_ge_u32 s52, 20\n    s_cselect_b32 s53, 20, 0\n    s_sub_u32 s52, s52, s53\n"
        if xmode == 128: b += "    s_and_b32 s52, s52, 0xfe\n"
    else: b += "    s_mov_b32 s52, 0\n"
    b += f"    s_lshr_b32 s53, s20, 1\n    s_lshl_b32 s53, s53, 21\n    s_add_u32 s53, s53, {4<<20}\n    s_mul_i32 s54, s46, 192\n    s_add_u32 s53, s53, s54\n    s_and_b32 s54, s20, 1\n    s_mul_i32 s54, s54, 49152\n    s_add_u32 s53, s53, s54\n"
    b += "    s_lshl2_add_u32 s54, s45, s20\n    s_mul_i32 s54, s54, 40960\n    s_lshl_b32 s24, s20, 14\n    s_mov_b32 m0, s24\n" + st(0)
    n = 0
    for t in range(20):
        b += "    s_mul_i32 s55, s52, 98304\n    s_add_u32 s55, s55, s53\n    s_lshl_b32 s56, s52, 6\n    s_add_u32 s56, s56, s54\n"
        k = 0
        if "w" in parts:
            for i in range(3): b += f"    buffer_load_dwordx4 v{4+i}, s[16:19], s55 offen {fl} lds\n"; k += 1
        if "x" in parts:
            if xmode == 64:
                b += f"    buffer_load_dwordx4 v7, s[16:19], s56 offen {fl} lds\n    s_add_u32 s56, s56, 20480\n    buffer_load_dwordx4 v7, s[16:19], s56 offen {fl} lds\n"; k += 2
            else:
                if t % 2: b += "    s_sub_u32 s56, s56, 64\n    s_add_u32 s56, s56, 20480\n"
                b += f"    buffer_load_dwordx4 v7, s[16:19], s56 offen {fl} lds\n    s_add_u32 s56, s56, 10240\n    buffer_load_dwordx4 v7, s[16:19], s56 offen {fl} lds\n"; k += 2
        b += f"    s_add_u32 s52, s52, 1\n    s_cmp_eq_u32 s52, 20\n    s_cselect_b32 s52, 0, s52\n"
        b += f"    s_waitcnt vmcnt({depth*k})\n" + st(1+t)
    b += "    s_waitcnt vmcnt(0)\n" + st(21)
    b += f"L_e_{name}:\n" + fin(name)
    return kern(name, b)
for cfgs in [(0,128,4,"8x4","w",""),(0,128,4,"8x4","w","sc1"),(0,128,4,"8x4","w","sc0 sc1"),(0,128,4,"8x4","w","sc0"),(0,128,4,"8x4","wx",""),(0,128,4,"8x4","wx","sc1"),(0,64,4,"8x4","wx","sc1"),(0,64,4,"8x4","wx","")]:
    nm = ("g1_%d_%d_%d_%s_%s_%sx_kernel" % cfgs).replace(" ", ""); names.append(nm); out += g1(nm, *cfgs)
hdr = "".join(f"; @launch kernel={n} grid=(256,1,1) block=(512,1,1) lds=65536\n" for n in names)
open("mb16.s","w").write(hdr + HDR + out)
```
